```python
import torch

def _softmax(x, axis=-1):
    return torch.softmax(x, dim=axis)

def _gelu(x):
    return torch.nn.functional.gelu(x, approximate='tanh')

def _silu(x):
    return torch.nn.functional.silu(x)

def _sigmoid(x):
    return torch.sigmoid(x)

def _layernorm(x, axis=-1, eps=1e-05):
    m = x.mean(dim=axis, keepdim=True)
    v = x.var(dim=axis, keepdim=True, unbiased=False)
    return (x - m) / torch.sqrt(v + eps)

def _scatter_add(tgt, idx, src, axis=0):
    return tgt.clone().index_add_(axis, idx, src)

def _segment_sum(src, seg, n):
    out = torch.zeros((n,) + src.shape[1:], dtype=src.dtype)
    return out.index_add_(0, seg, src)

def _pad(x, pw):
    flat = tuple((v for pair in reversed(pw) for v in pair))
    return torch.nn.functional.pad(x, flat)
kernel_name = 'adaLN_cond__ssm_conv_s4__glu_gated_glu__prompt'

def setup_inputs():

    _w = lambda a: (lambda t: t.to(torch.bfloat16) if t.is_floating_point() else t)(torch.as_tensor(a))

    def _A_setup():
        B, L, D, N = (1, 2048, 512, 128)
        A_re = -(lambda _x: torch.exp(torch.as_tensor(_x)))((lambda *s: torch.randn(*s, dtype=torch.bfloat16) * 3.2)(D, N))
        A_im = torch.pi * (lambda *s: torch.randn(*s, dtype=torch.bfloat16) * 0.1)(D, N)
        B_re = (lambda *s: torch.randn(*s, dtype=torch.bfloat16) * 0.2)(D, N)
        B_im = (lambda *s: torch.randn(*s, dtype=torch.bfloat16) * 0.2)(D, N)
        C_re = (lambda *s: torch.randn(*s, dtype=torch.bfloat16) * 0.2)(D, N)
        C_im = (lambda *s: torch.randn(*s, dtype=torch.bfloat16) * 0.2)(D, N)
        log_dt = (lambda *s: torch.randn(*s, dtype=torch.bfloat16) * 0.1)(D) * 0.5 - 4.0
        Dskip = (lambda *s: torch.randn(*s, dtype=torch.bfloat16) * 0.1)(D)
        return {'u': _w((lambda *s: torch.randn(*s, dtype=torch.bfloat16) * 0.05)(B, L, D)), 'A_re': _w(A_re), 'A_im': _w(A_im), 'B_re': _w(B_re), 'B_im': _w(B_im), 'C_re': _w(C_re), 'C_im': _w(C_im), 'log_dt': _w(log_dt), 'Dskip': _w(Dskip)}
    _A_in = _A_setup()

    def _B_setup():
        B, S, D, F = (1, 2048, 512, 1792)
        return {'x': _w((lambda *s: torch.randn(*s, dtype=torch.bfloat16) * 0.05)(B, S, D)), 'w_gate': _w((lambda *s: torch.randn(*s, dtype=torch.bfloat16) * 0.05)(D, F)), 'w_up': _w((lambda *s: torch.randn(*s, dtype=torch.bfloat16) * 0.05)(D, F)), 'w_down': _w((lambda *s: torch.randn(*s, dtype=torch.bfloat16) * 0.05)(F, D))}
    _B_in = _B_setup()
    return {'A_u': _A_in['u'], 'A_A_re': _A_in['A_re'], 'A_A_im': _A_in['A_im'], 'A_B_re': _A_in['B_re'], 'A_B_im': _A_in['B_im'], 'A_C_re': _A_in['C_re'], 'A_C_im': _A_in['C_im'], 'A_log_dt': _A_in['log_dt'], 'A_Dskip': _A_in['Dskip'], 'B_x': _B_in['x'], 'B_w_gate': _B_in['w_gate'], 'B_w_up': _B_in['w_up'], 'B_w_down': _B_in['w_down'], 'c': _w((lambda *s: torch.randn(*s, dtype=torch.bfloat16) * 0.1)(1, 512) * 8.0), 'w_mod': _w((lambda *s: torch.randn(*s, dtype=torch.bfloat16) * 0.1)(512, 6 * 512) * 512 ** (-0.5) * 8.0)}

def reference(A_u, A_A_re, A_A_im, A_B_re, A_B_im, A_C_re, A_C_im, A_log_dt, A_Dskip, B_x, B_w_gate, B_w_up, B_w_down, c, w_mod):

    def _A_ref(u, A_re, A_im, B_re, B_im, C_re, C_im, log_dt, Dskip):
        Bsz, L, D = u.shape
        dt = torch.exp(log_dt)[:, None]
        A = A_re + 1j * A_im
        Bc = B_re + 1j * B_im
        Cc = C_re + 1j * C_im
        logdA = dt * A
        dB = dt * Bc
        l = (lambda x, dt: x.to(dt))(torch.arange(L), A_re.dtype)
        P = torch.exp(logdA[:, :, None] * l[None, None, :])
        K = torch.einsum('dn,dnl,dn->dl', Cc, P, dB).real
        L2 = 2 * L
        Kp = _pad(K, ((0, 0), (0, L)))
        up = (lambda x, *d: x.permute(*d))(u, 0, 2, 1)
        up = _pad(up, ((0, 0), (0, 0), (0, L)))
        Kf = (lambda x, axes=(-2, -1): torch.fft.rfft2(x.float(), dim=axes))(Kp[:, None, :], axes=(-2, -1))
        Uf = (lambda x, axes=(-2, -1): torch.fft.rfft2(x.float(), dim=axes))(up[:, :, None, :], axes=(-2, -1))
        Yf = Uf * Kf[None, :, :, :]
        y = (lambda x, s, axes=(-2, -1): torch.fft.irfft2(x, s=s, dim=axes).to(torch.bfloat16))(Yf, (1, L2), axes=(-2, -1))[:, :, 0, :L]
        y = (lambda x, *d: x.permute(*d))(y, 0, 2, 1) + u * Dskip[None, None, :]
        return y

    def _B_ref(x, w_gate, w_up, w_down):
        g = torch.einsum('bsd,df->bsf', x, w_gate)
        u = torch.einsum('bsd,df->bsf', x, w_up)
        h = _sigmoid(g) * u
        return torch.einsum('bsf,fd->bsd', h, w_down)
    x = A_u
    mod = (_silu(c) @ w_mod).reshape(c.shape[0], 6, 1, -1)
    sa, ca, ga, sb, cb, gb = (mod[:, 0].clone(), mod[:, 1].clone(), mod[:, 2].clone(), mod[:, 3].clone(), mod[:, 4].clone(), mod[:, 5].clone())
    h = _layernorm(x, axis=-1) * (1 + ca) + sa
    x = x + ga * _A_ref(h, A_A_re, A_A_im, A_B_re, A_B_im, A_C_re, A_C_im, A_log_dt, A_Dskip)
    h = _layernorm(x, axis=-1) * (1 + cb) + sb
    x = x + gb * _B_ref(h, B_w_gate, B_w_up, B_w_down)
    return x
```

```python
import re

TRANS = ('v_exp_f32', 'v_log_f32', 'v_rcp_f32', 'v_rsq_f32', 'v_sqrt_f32', 'v_sin_f32', 'v_cos_f32', 'v_rcp_iflag_f32')

def v(n, cnt=1):
    return f'v{n}' if cnt == 1 else f'v[{n}:{n+cnt-1}]'
def a(n, cnt=1):
    return f'a{n}' if cnt == 1 else f'a[{n}:{n+cnt-1}]'
def s(n, cnt=1):
    return f's{n}' if cnt == 1 else f's[{n}:{n+cnt-1}]'

_reg_re = re.compile(r'^(-|abs\(|\|)?([vas])(?:(\d+)|\[(\d+):(\d+)\])\)?\|?$')

def regs_of(tok):
    tok = tok.strip()
    if tok.startswith('-'): tok = tok[1:]
    if tok.startswith('abs(') and tok.endswith(')'): tok = tok[4:-1]
    if tok.startswith('|') and tok.endswith('|'): tok = tok[1:-1]
    if tok == 'vcc': return {('s', 'vcc_lo'), ('s', 'vcc_hi')}
    if tok in ('vcc_lo', 'vcc_hi'): return {('s', tok)}
    if tok == 'exec': return {('x', 'exec')}
    if tok == 'm0': return {('m', 0)}
    m = re.match(r'^([vas])(?:(\d+)|\[(\d+):(\d+)\])$', tok)
    if not m: return set()
    k = m.group(1)
    if m.group(2) is not None: return {(k, int(m.group(2)))}
    return {(k, i) for i in range(int(m.group(3)), int(m.group(4)) + 1)}

class Ins:
    def __init__(self, text):
        self.text = text
        t = text.split(';')[0].strip()
        self.is_label = t.endswith(':')
        self.is_dir = t.startswith('.') and not self.is_label
        self.empty = (t == '')
        self.mn = ''
        self.dst = set(); self.src = set()
        self.cls = 'other'
        if self.is_label or self.is_dir or self.empty: return
        parts = t.split(None, 1)
        mn = parts[0]; self.mn = mn
        rest = parts[1] if len(parts) > 1 else ''
        ops = []; depth = 0; cur = ''
        for ch in rest:
            if ch in '[(': depth += 1
            if ch in '])': depth -= 1
            if ch == ',' and depth == 0: ops.append(cur.strip()); cur = ''
            else: cur += ch
        if cur.strip(): ops.append(cur.strip())
        mods = ''
        if ops:
            sp = ops[-1].split(None, 1)
            if len(sp) > 1: ops[-1] = sp[0]; mods = sp[1]
        self.ops = ops; self.mods = mods
        R = [regs_of(o) for o in ops]
        self.R = R
        if mn.startswith('v_mfma'):
            self.cls = 'mfma'
            self.dst = R[0]; self.srcA = R[1]; self.srcB = R[2]; self.srcC = R[3]
            self.src = R[1] | R[2] | R[3]
            self.passes = 8 if '32x32x16' in mn else 4
            assert ('32x32x16' in mn) or ('16x16x32' in mn), mn
        elif mn.startswith('v_'):
            self.cls = 'valu'
            base = mn.replace('_e32', '').replace('_e64', '').replace('_dpp', '').replace('_sdwa', '')
            self.base = base
            self.trans = base in TRANS
            self.dpp = ('_dpp' in mn) or ('row_' in mods) or ('quad_perm' in mods)
            self.permlane = base.startswith('v_permlane')
            self.readlane = base in ('v_readlane_b32', 'v_readfirstlane_b32')
            if base.startswith('v_cmp'):
                self.dst = R[0]; self.src = set().union(*R[1:])
                if base.startswith('v_cmpx'): self.dst = self.dst | {('x', 'exec')}
            elif self.permlane and 'swap' in base:
                self.dst = R[0] | R[1]; self.src = R[0] | R[1]
            elif base in ('v_add_co_u32', 'v_sub_co_u32', 'v_subrev_co_u32'):
                self.dst = R[0] | R[1]; self.src = set().union(*R[2:])
            elif base in ('v_addc_co_u32', 'v_subb_co_u32'):
                self.dst = R[0] | R[1]; self.src = set().union(*R[2:])
            else:
                self.dst = R[0]; self.src = set().union(*R[1:]) if len(R) > 1 else set()
                if base in ('v_fmac_f32', 'v_writelane_b32', 'v_dot2c_f32_bf16', 'v_pk_fmac_f16') or self.dpp: self.src = self.src | R[0]
                if base == 'v_cndmask_b32' and len(ops) == 3: self.src |= regs_of('vcc')
        elif mn.startswith('buffer_') or mn.startswith('global_'):
            self.cls = 'vmem'
            self.lds = bool(re.search(r'\blds\b', mods)) or '_lds_' in mn
            if mn in ('buffer_wbl2', 'buffer_inv'):
                pass
            elif 'store' in mn:
                self.store = True
                if mn.startswith('buffer_'): self.data = R[0]
                else: self.data = R[1]
                self.src = set().union(*R)
                self.wide = ('x3' in mn) or ('x4' in mn)
            elif 'atomic' in mn:
                self.src = set().union(*R)
                if 'sc0' in mods: self.dst = R[0]
            elif self.lds:
                self.src = set().union(*R) | {('m', 0)}
            else:
                self.dst = R[0]; self.src = set().union(*R[1:])
                if 'd16' in mn: self.src |= R[0]
        elif mn.startswith('ds_'):
            self.cls = 'ds'
            if mn.startswith('ds_read') or mn.startswith('ds_bpermute') or mn.startswith('ds_permute') or mn.startswith('ds_swizzle'):
                self.dst = R[0]; self.src = set().union(*R[1:])
            else:
                self.src = set().union(*R)
        elif mn.startswith('s_'):
            self.cls = 'salu'
            if mn.startswith('s_cmp') or mn.startswith('s_cbranch') or mn in ('s_branch', 's_waitcnt', 's_barrier', 's_nop', 's_endpgm', 's_sleep', 's_setprio'):
                self.src = set().union(*R) if R else set()
            else:
                self.dst = R[0] if R else set(); self.src = set().union(*R[1:]) if len(R) > 1 else set()
                if 'saveexec' in mn: self.dst = self.dst | {('x', 'exec')}
    def states(self):
        if self.is_label or self.is_dir or self.empty: return 0
        if self.mn == 's_nop': return int(self.ops[0], 0) + 1
        return 1

def vonly(S): return {r for r in S if r[0] in 'va'}
def sonly(S): return {r for r in S if r[0] == 's'}

def need(p, c):
    n = 0
    if p.cls == 'valu':
        pv = vonly(p.dst); ps = sonly(p.dst)
        if c.cls == 'mfma' and pv & c.src: n = max(n, 2)
        if c.cls == 'valu':
            if p.trans and not c.trans and (pv & c.src): n = max(n, 1)
            if c.readlane and (pv & c.src): n = max(n, 1)
            if (c.dpp or c.permlane) and (pv & c.src): n = max(n, 2)
            if ps & c.src: n = max(n, 4 if c.base in ('v_readlane_b32', 'v_writelane_b32') else 2)
            if ('x', 'exec') in p.dst: n = max(n, 5)
        if p.base.startswith('v_dot') and (pv & (c.src | c.dst)):
            same_c = (c.cls == 'valu' and c.base == p.base and not (pv & (c.R[1] | c.R[2])))
            if not same_c: n = max(n, 3)
        if c.cls == 'vmem' and (ps & c.src): n = max(n, 5)
        if c.cls == 'salu' and (ps & c.src): n = max(n, 1)
        if c.cls == 'mfma' and ('x', 'exec') in p.dst: n = max(n, 4)
    if p.cls == 'mfma':
        big = 8 if p.passes == 4 else 12
        if c.cls == 'mfma':
            if p.dst & (c.srcA | c.srcB): n = max(n, big)
            if p.dst & c.srcC:
                if not (p.dst == c.srcC and p.passes == c.passes): n = max(n, big - 2)
            elif p.dst & c.dst: n = max(n, big)
        elif c.cls in ('valu', 'vmem', 'ds'):
            if p.dst & (c.src | c.dst): n = max(n, big)
            if c.cls == 'valu' and (p.srcC & c.dst): n = max(n, 3 if p.passes == 4 else 7)
    if p.cls == 'vmem' and getattr(p, 'store', False) and p.wide:
        if p.data & c.dst: n = max(n, 2)
    if p.cls == 'ds' and p.mn in ('ds_write_b128', 'ds_write_b96') and c.cls == 'valu':
        if vonly(p.src) & c.dst: n = max(n, 1)
    if p.cls == 'salu' and ('m', 0) in p.dst:
        if c.cls == 'vmem' and ('m', 0) in c.src: n = max(n, 1)
    return n

class Asm:
    def __init__(self):
        self.lines = []
    def __call__(self, text):
        for ln in text.split('\n'):
            ln = ln.strip()
            if ln: self.lines.append(ln)
    def label(self, name): self.lines.append(name + ':')
    def comment(self, t): self.lines.append('; ' + t)
    def finish(self):
        out = []; hist = []
        npad = 0
        for ln in self.lines:
            ins = Ins(ln)
            if ins.is_label or ins.is_dir or ins.empty:
                out.append(ins); continue
            req = 0; dist = 0
            for p in reversed(out):
                if dist >= 13: break
                if p.is_label or p.is_dir or p.empty: continue
                nd = need(p, ins)
                if nd > dist: req = max(req, nd - dist)
                dist += p.states()
            if req > 0:
                npad += 1
                out.append(Ins(f's_nop {req-1}'))
            out.append(ins)
        txt = []
        for i in out:
            txt.append(i.text if (i.is_label or i.is_dir) else '    ' + i.text)
        self.npad = npad
        return '\n'.join(txt) + '\n'
```

```python
from asmlib import *
NAME = 'adaLN_cond__ssm_conv_s4__glu_gated_glu__prompt'
WS_EPOCH = 0
WS_STATS1 = 0x1000
WS_MODG = 0x5000
WS_MODP = 0x8000
WS_STATS2 = 0xA000
WS_FLAGS = 0x10000
WS_W1F = 0x100000
WS_W2F = 0x480000
WS_X1P = 0x640000
WS_X1S = 0x840000
WS_HHP = 0xA40000
WS_END = 0x1140000
P_X, P_ARE, P_AIM, P_BRE, P_BIM, P_CRE, P_CIM, P_LDT = 16, 18, 20, 22, 24, 26, 28, 30
P_DSK, P_BX, P_WG, P_WU, P_WD, P_C, P_WMOD, P_OUT = 32, 34, 36, 38, 40, 42, 44, 46
P_DBG, P_WS = 48, 50
SRD_WS = 52
SRD_X = 56
SRD_WMOD = 60
SRD_OUT = 64
SRD_WD = 68

def kernarg(A, lo=True, hi=True):
    if lo: A('s_load_dwordx16 s[16:31], s[0:1], 0')
    if hi: A('s_load_dwordx16 s[32:47], s[0:1], 64')
    A('s_load_dwordx4 s[48:51], s[0:1], 128')

def srd(A, d, ptr, nbytes):
    A(f's_mov_b32 s{d}, s{ptr}')
    A(f's_and_b32 s{d+1}, s{ptr+1}, 0xffff')
    A(f's_mov_b32 s{d+2}, {nbytes:#x}')
    A(f's_mov_b32 s{d+3}, 0x20000')

def kernel_head(name):
    return f'.globl {name}\n.p2align 8\n.type {name},@function\n{name}:\n'

def kernel_desc(name, nvgpr, accum, nsgpr=100):
    return f""".p2align 6
.amdhsa_kernel {name}
  .amdhsa_next_free_vgpr {nvgpr}
  .amdhsa_next_free_sgpr {nsgpr}
  .amdhsa_accum_offset {accum}
  .amdhsa_group_segment_fixed_size 0
  .amdhsa_kernarg_size 144
  .amdhsa_user_sgpr_count 2
  .amdhsa_user_sgpr_kernarg_segment_ptr 1
  .amdhsa_system_sgpr_workgroup_id_x 1
.end_amdhsa_kernel
"""
DPPM = 'row_mask:0xf bank_mask:0xf'
def cmul(A, d, x, y):
    A(f'v_pk_mul_f32 {v(d,2)}, {v(x,2)}, {v(y,2)} op_sel:[0,0] op_sel_hi:[1,0]')
    A(f'v_pk_fma_f32 {v(d,2)}, {v(x,2)}, {v(y,2)}, {v(d,2)} op_sel:[1,1,0] op_sel_hi:[0,1,1] neg_lo:[1,0,0]')

import os
DIAG = bool(int(os.environ.get('DIAG', '0')))
WS_DIAG = 0x40000
def stamp(A, reg, k):
    if not DIAG: return
    A('s_memrealtime s[94:95]')
    A('s_memtime s[96:97]')
    A('s_waitcnt lgkmcnt(0)')
    A(f'v_writelane_b32 v{reg}, s94, {k}')
    A(f'v_writelane_b32 v{reg}, s96, {k+16}')
def stamp_flush(A, reg, kern, tmp):
    if not DIAG: return
    A('s_waitcnt vmcnt(0)')
    stamp(A, reg, 15)
    A('s_lshl_b32 s94, s2, 9')
    A('s_lshl_b32 s95, s3, 7')
    A('s_add_u32 s94, s94, s95')
    A(f's_add_u32 s94, s94, {WS_DIAG + kern*131072:#x}')
    A(f'v_lshlrev_b32 v{tmp}, 2, v1')
    A('s_mov_b32 exec_lo, -1'); A('s_mov_b32 exec_hi, 0')
    A(f'buffer_store_dword v{reg}, v{tmp}, {s(SRD_WS,4)}, s94 offen')
```

```python
from common import *
from jobs1 import setup_ids

PITCH = 544
L_KC = 0; KCCH = 2112
L_RT = L_KC + 2 * KCCH; RTCH = 8320; R1OFF = 4160
L_UT = L_RT + 2 * RTCH; UTCH = 4608
L_XT = L_UT + 2 * UTCH
L_SCR = L_XT + 8192
L_WV = L_SCR + 256; WVCH = 64 * PITCH
L_END = L_WV + 2 * WVCH
L_RED = L_WV
assert L_RT % 16 == 0 and L_UT % 16 == 0 and L_XT % 16 == 0 and L_WV % 16 == 0
S_PAIR = 75

V_PAR = 8
V_DT = 15
V_X = 16
V_ST = 24
V_MOD = 40
V_DK = 48
V_EA = 50
V_TAU = 59
V_T = 60
V_A = 64
V_ACC = 96
V_B = 128

def pair_id(A):
    A(f's_and_b32 s{S_PAIR}, s2, 7')
    A(f's_lshl_b32 s{S_PAIR}, s{S_PAIR}, 5')
    A('s_lshr_b32 s4, s2, 3')
    A(f's_add_u32 s{S_PAIR}, s{S_PAIR}, s4')

def params_issue(A):
    for k in range(7): A(f'v_mov_b32 v{V_PAR+k}, 0')
    A(f's_lshl_b32 s4, s{S_PAIR}, 9')
    A(f'v_lshl_add_u32 v{V_T}, v0, 1, s4')
    for k, p in enumerate((P_ARE, P_AIM, P_BRE, P_BIM, P_CRE, P_CIM)):
        A(f'global_load_short_d16_hi v{V_PAR+k}, v{V_T}, {s(p,2)}')
    A(f's_lshl_b32 s4, s{S_PAIR}, 2')
    A(f'v_lshrrev_b32 v{V_T+1}, 7, v0')
    A(f'v_lshl_add_u32 v{V_T+1}, v{V_T+1}, 1, s4')
    A(f'global_load_short_d16_hi v{V_PAR+6}, v{V_T+1}, {s(P_LDT,2)}')
    A(f'v_mov_b32 v{V_T+2}, s4')
    A(f'global_load_dword v{V_DK}, v{V_T+2}, {s(P_DSK,2)}')
    return 8

def gather_issue(A):
    A('s_lshr_b32 s4, s2, 3')
    A('s_lshl_b32 s4, s4, 3')
    A(f'v_add_u32 v{V_TAU}, s4, v0')
    A(f'v_and_b32 v{V_TAU}, 255, v{V_TAU}')
    A(f's_lshl_b32 s4, s{S_PAIR}, 2')
    A(f'v_lshl_add_u32 v{V_T}, v{V_TAU}, 13, s4')
    A('s_movk_i32 s5, 0x1000')
    for k in range(8):
        so = '0' if k < 4 else 's5'
        A(f'buffer_load_dword v{V_X+k}, v{V_T}, {s(SRD_X,4)}, {so} offen offset:{1024*(k&3)}')
    return 8

def stats_issue(A, flags=''):
    A(f'v_lshlrev_b32 v{V_T}, 6, v{V_TAU}')
    A(f's_mov_b32 s5, {WS_STATS1:#x}')
    for k in range(4):
        A(f'buffer_load_dwordx4 {v(V_ST+4*k,4)}, v{V_T}, {s(SRD_WS,4)}, s5 offen offset:{16*k} {flags}')
    return 4

def mod_issue(A, flags=''):
    A(f's_lshl_b32 s4, s{S_PAIR}, 3')
    A(f'v_mov_b32 v{V_T+1}, s4')
    A(f's_mov_b32 s5, {WS_MODG:#x}')
    A(f's_mov_b32 s4, {WS_MODG + 4*2048:#x}')
    A(f'buffer_load_dwordx2 {v(V_MOD,2)}, v{V_T+1}, {s(SRD_WS,4)}, s5 offen {flags}')
    A(f'buffer_load_dwordx2 {v(V_MOD+2,2)}, v{V_T+1}, {s(SRD_WS,4)}, s5 offen offset:2048 {flags}')
    A(f'buffer_load_dwordx2 {v(V_MOD+6,2)}, v{V_T+1}, {s(SRD_WS,4)}, s4 offen {flags}')
    A(f's_mov_b32 s5, {WS_MODG + 2*2048:#x}')
    A(f'buffer_load_dwordx2 {v(V_MOD+4,2)}, v{V_T+1}, {s(SRD_WS,4)}, s5 offen {flags}')
    return 4

def const_setup(A):
    T = V_A
    for k in range(4): A(f'v_mov_b32 v{T+k}, 0')
    A(f'v_lshlrev_b32 v{T+4}, 4, v1')
    A('s_mov_b64 exec, 0x3fffffff')
    A(f'ds_write_b128 v{T+4}, {v(T,4)} offset:{L_UT}')
    A(f'ds_write_b128 v{T+4}, {v(T,4)} offset:{L_UT+UTCH}')
    A('s_mov_b64 exec, 3')
    for ch in range(2):
        A(f'ds_write_b128 v{T+4}, {v(T,4)} offset:{L_RT+ch*RTCH+4096}')
        A(f'ds_write_b128 v{T+4}, {v(T,4)} offset:{L_RT+ch*RTCH+R1OFF+4096}')
        A(f'ds_write_b128 v{T+4}, {v(T,4)} offset:{L_KC+ch*KCCH+2048}')
    A('s_mov_b64 exec, -1')
    L0 = T + 4; F = T + 6; PK = T + 16; LL = T + 22
    A(f'v_lshlrev_b32 v{L0}, 3, v0')
    A(f'v_sub_u32 v{L0}, 2047, v{L0}')
    A(f'v_cvt_f32_i32 v{F}, v{L0}')
    for e in range(1, 10): A(f'v_subrev_f32 v{F+e}, {float(e)!r}, v{F}') if e in (1, 2, 4) else A(f'v_add_f32 v{F+e}, {f32hex(-float(e))}, v{F}')
    for e in range(0, 10, 2): A(f'v_cvt_pk_bf16_f32 v{PK+e//2}, v{F+e}, v{F+e+1}')
    A(f's_movk_i32 s4, {128+0x4280:#x}')
    A(f's_mov_b32 s5, {(L_KC - 2*0x4280) & 0xffffffff:#x}')
    for e in range(9):
        if e & 1: A(f'v_lshrrev_b32 v{V_EA+e}, 16, v{PK+e//2}')
        else: A(f'v_and_b32 v{V_EA+e}, 0xffff, v{PK+e//2}')
        A(f'v_add_u32 v{LL}, {0x4280-e:#x}, v{L0}')
        A(f'v_med3_i32 v{V_EA+e}, v{V_EA+e}, v{LL}, s4')
        A(f'v_lshl_add_u32 v{V_EA+e}, v{V_EA+e}, 1, s5')
    A(f'v_mov_b32 v{LL}, {L_KC+2048}')
    A('v_cmp_eq_u32 vcc, 0xff, v0')
    A(f'v_cndmask_b32 v{V_EA+8}, v{V_EA+8}, v{LL}, vcc')

import struct
def f32hex(x): return '0x%08x' % struct.unpack('<I', struct.pack('<f', x))[0]

def kgen_valu(A):
    ARE, AIM, BRE, BIM, CRE, CIM, LDT = [V_PAR + k for k in range(7)]
    AL, BE = V_T, V_T + 1
    A(f'v_mul_f32 v{V_DT}, 0x3fb8aa3b, v{LDT}')
    A(f'v_exp_f32 v{V_DT}, v{V_DT}')
    AD = V_T + 2
    A(f'v_lshrrev_b32 v{AD}, 7, v0')
    A(f'v_mul_u32_u24 v{AD}, {WVCH}, v{AD}')
    A(f'v_and_b32 v{AD+1}, 127, v0')
    A(f'v_lshl_add_u32 v{AD}, v{AD+1}, 2, v{AD}')
    A(f'v_add_u32 v{AD}, {L_WV}, v{AD}')
    A(f'v_cvt_pk_bf16_f32 v{V_DT}, v{V_DT}, v{V_DT}')
    A(f'v_lshlrev_b32 v{V_DT}, 16, v{V_DT}')
    A(f'v_mul_f32 v{AL}, v{V_DT}, v{ARE}')
    A(f'v_mul_f32 v{BE}, v{V_DT}, v{AIM}')
    A(f'v_mul_f32 v{AL}, 0x3fb8aa3b, v{AL}')
    A(f'v_mul_f32 v{BE}, 0.15915494, v{BE}')
    W = V_B
    Vv = V_B + 44
    Z1, Z2, Z4, Z256, Z512, Z1024 = V_A, V_A + 2, V_A + 4, V_A + 6, V_A + 8, V_A + 10
    E = V_A + 12
    PKT = V_A + 20
    tgt = [(Z1, 1.0), (Vv + 2, 8.0), (Z256, 256.0)]
    for i, (d, o) in enumerate(tgt):
        if o == 1.0:
            A(f'v_exp_f32 v{E+i}, v{AL}')
            A(f'v_fract_f32 v{E+3+i}, v{BE}')
        else:
            A(f'v_mul_f32 v{E+i}, {f32hex(o)}, v{AL}')
            A(f'v_mul_f32 v{E+3+i}, {f32hex(o)}, v{BE}')
            A(f'v_exp_f32 v{E+i}, v{E+i}')
            A(f'v_fract_f32 v{E+3+i}, v{E+3+i}')
    for i, (d, o) in enumerate(tgt):
        A(f'v_cos_f32 v{d}, v{E+3+i}')
        A(f'v_sin_f32 v{d+1}, v{E+3+i}')
    cmul(A, W, CRE, BRE)
    for i, (d, o) in enumerate(tgt):
        ep = (E + i) & ~1; hi = (E + i) & 1
        A(f'v_pk_mul_f32 {v(d,2)}, {v(d,2)}, {v(ep,2)} op_sel:[0,{hi}] op_sel_hi:[1,{hi}]')
    cnt = [0]
    def emit_row(row, reg, conj):
        t = PKT + (cnt[0] % 8); cnt[0] += 1
        A(f'v_cvt_pk_bf16_f32 v{t}, v{reg}, {"-" if conj else ""}v{reg+1}')
        A(f'ds_write_b32 v{AD}, v{t} offset:{row*PITCH}')
    w = lambda r: W + 2*r
    vv = lambda r: Vv + 2*r
    ops = []
    ops += [(vv(2), vv(1), vv(1), 34, True), (Z2, Z1, Z1, None, 0), (Z512, Z256, Z256, None, 0), (w(1), w(0), Z1, 1, False)]
    ops += [(vv(4), vv(2), vv(2), 36, True), (Z4, Z2, Z2, None, 0), (Z1024, Z512, Z512, None, 0), (vv(3), vv(2), vv(1), 35, True)]
    ops += [(w(2), w(0), Z2, 2, False), (w(3), w(1), Z2, 3, False), (vv(8), vv(4), vv(4), 40, True)]
    ops += [(w(4+i), w(i), Z4, 4+i, False) for i in range(4)]
    ops += [(vv(16), vv(8), vv(8), 48, True)]
    ops += [(vv(4+i), vv(4), vv(i), 36+i, True) for i in range(1, 4)]
    ops += [(w(8+i), w(2*i), Z256, 8+i, False) for i in range(4)]
    ops += [(vv(8+i), vv(8), vv(i), 40+i, True) for i in range(1, 8)]
    ops += [(w(12), w(0), Z512, 12, False), (w(13), w(4), Z512, 13, False), (w(14), w(8), Z512, 14, False), (w(15), w(10), Z512, 15, False)]
    ops += [(w(16), w(0), Z1024, 16, False), (w(17), w(8), Z1024, 17, False), (w(18), w(12), Z1024, 18, False), (w(19), w(14), Z1024, 19, False)]
    ops += [(vv(16+i), vv(16), vv(i), 48+i, True) for i in range(1, 16)]
    ops += [(w(20), w(16), Z1024, 20, False)]
    A(f'v_mov_b32 v{E}, 0x3f80')
    A(f'ds_write_b32 v{AD}, v{E} offset:{32*PITCH}')
    emit_row(0, w(0), False); emit_row(33, vv(1), True)
    pend = None
    for (d, x, y, row, conj) in ops:
        cmul(A, d, x, y)
        if pend: emit_row(*pend)
        pend = (row, d, conj) if row is not None else None
    if pend: emit_row(*pend)

def kgen_mfma(A):
    AW, AV = V_T, V_T + 1
    T = V_A
    A(f'v_and_b32 v{T}, 15, v1')
    A(f'v_lshrrev_b32 v{T+1}, 4, v1')
    A(f'v_mul_u32_u24 v{AW}, {PITCH}, v{T}')
    A(f'v_lshl_add_u32 v{AW}, v{T+1}, 4, v{AW}')
    A('s_lshr_b32 s4, s3, 1')
    A(f's_mul_i32 s4, s4, {WVCH}')
    A(f's_add_u32 s4, s4, {L_WV}')
    A(f'v_add_u32 v{AW}, s4, v{AW}')
    A('s_and_b32 s5, s3, 1')
    A(f's_mul_i32 s5, s5, {16*PITCH}')
    A(f'v_add_u32 v{AV}, s5, v{AW}')
    F = V_B
    order = []
    for k in range(8):
        order += [(F + 12*k, AV, 32*PITCH + 64*k), (F + 12*k + 4, AW, 64*k), (F + 12*k + 8, AW, 16*PITCH + 64*k)]
    for i in range(12): A(f'ds_read_b128 {v(order[i][0],4)}, v{order[i][1]} offset:{order[i][2]}')
    A('s_and_b32 s5, s3, 1')
    A('s_lshl_b32 s5, s5, 4')
    A(f'v_add_u32 v{T}, s5, v{T}')
    A('s_lshr_b32 s4, s3, 1')
    A(f's_mul_i32 s4, s4, {KCCH}')
    assert L_KC == 0
    WA, WB, WC = T + 2, T + 3, T + 4
    A(f'v_lshlrev_b32 v{WA}, 4, v{T}')
    A(f'v_add_u32 v{T+5}, 8, v{WA}')
    A(f'v_cmp_eq_u32 vcc, 1, v{T+1}')
    A(f'v_cndmask_b32 v{WA}, v{WA}, v{T+5}, vcc')
    A(f'v_lshlrev_b32 v{T+5}, 3, v{T}')
    A(f'v_add_u32 v{T+5}, 512, v{T+5}')
    A(f'v_cmp_eq_u32 vcc, 2, v{T+1}')
    A(f'v_cndmask_b32 v{WA}, v{WA}, v{T+5}, vcc')
    A(f'v_lshlrev_b32 v{T+5}, 2, v{T}')
    A(f'v_add_u32 v{T+5}, 768, v{T+5}')
    A(f'v_cmp_eq_u32 vcc, 3, v{T+1}')
    A(f'v_cndmask_b32 v{WA}, v{WA}, v{T+5}, vcc')
    A(f'v_mov_b32 v{T+5}, 4')
    A(f'v_mov_b32 v{T+6}, 128')
    A(f'v_cndmask_b32 v{T+5}, v{T+5}, v{T+6}, vcc')
    A(f'v_add_u32 v{WA}, s4, v{WA}')
    A(f'v_add_u32 v{WB}, v{WA}, v{T+5}')
    A(f'v_lshlrev_b32 v{WC}, 8, v{T+1}')
    A(f'v_lshl_add_u32 v{WC}, v{T}, 1, v{WC}')
    A(f'v_add_u32 v{WC}, s4, v{WC}')
    nxt = 12
    for k in range(8):
        outstanding_after = nxt - 3*(k+1)
        A(f's_waitcnt lgkmcnt({outstanding_after})')
        c0 = '0' if k == 0 else v(V_ACC,4); c1 = '0' if k == 0 else v(V_ACC+4,4)
        A(f'v_mfma_f32_16x16x32_bf16 {v(V_ACC,4)}, {v(F+12*k+4,4)}, {v(F+12*k,4)}, {c0}')
        A(f'v_mfma_f32_16x16x32_bf16 {v(V_ACC+4,4)}, {v(F+12*k+8,4)}, {v(F+12*k,4)}, {c1}')
        for _ in range(3):
            if nxt < 24:
                A(f'ds_read_b128 {v(order[nxt][0],4)}, v{order[nxt][1]} offset:{order[nxt][2]}'); nxt += 1
    dp = V_DT & ~1; hi = V_DT & 1
    for j in range(4):
        A(f'v_pk_mul_f32 {v(V_ACC+2*j,2)}, {v(V_ACC+2*j,2)}, {v(dp,2)} op_sel:[0,{hi}] op_sel_hi:[1,{hi}]')
    for j in range(4):
        A(f'v_cvt_pk_bf16_f32 v{V_ACC+8+j}, v{V_ACC+2*j}, v{V_ACC+2*j+1}')
    A(f'ds_write_b32 v{WA}, v{V_ACC+8}')
    A(f'ds_write_b32 v{WB}, v{V_ACC+9}')
    A(f'ds_write_b16 v{WC}, v{V_ACC+10} offset:1024')
    A(f'ds_write_b16_d16_hi v{WC}, v{V_ACC+10} offset:{1024+64}')
    A(f'ds_write_b16 v{WC}, v{V_ACC+11} offset:{1024+128}')
    A(f'ds_write_b16_d16_hi v{WC}, v{V_ACC+11} offset:{1024+192}')

def expand(A):
    G = V_B; O = V_B + 32
    A(f'v_lshlrev_b32 v{V_T}, 4, v0')
    for e in range(9): A(f'ds_read_u16 v{G+e}, v{V_EA+e}')
    for e in range(5): A(f'ds_read_u16 v{G+16+e}, v{V_EA+e} offset:{KCCH}')
    A('s_waitcnt lgkmcnt(5)')
    for e in range(5, 9): A(f'ds_read_u16 v{G+16+e}, v{V_EA+e} offset:{KCCH}')
    for ch in range(2):
        g = G + 16*ch; o = O + 8*ch
        for y in range(4):
            A(f'v_lshl_or_b32 v{o+y}, v{g+2*y+1}, 16, v{g+2*y}')
            A(f'v_lshl_or_b32 v{o+4+y}, v{g+2*y+2}, 16, v{g+2*y+1}')
        if ch == 0: A('s_waitcnt lgkmcnt(0)')
        A(f'ds_write_b128 v{V_T}, {v(o,4)} offset:{L_RT+ch*RTCH}')
        A(f'ds_write_b128 v{V_T}, {v(o+4,4)} offset:{L_RT+ch*RTCH+R1OFF}')

V_SA, V_CA, V_GA, V_CB, V_DKF = 2, 4, 6, 40, 42
def mod_unpack(A):
    for d, src in ((V_SA, V_MOD), (V_CA, V_MOD+2), (V_GA, V_MOD+4), (V_DKF, V_DK)):
        A(f'v_lshlrev_b32 v{d}, 16, v{src}')
        A(f'v_and_b32 v{d+1}, 0xffff0000, v{src}')
    A(f'v_lshlrev_b32 v{V_CB}, 16, v{V_MOD+6}')
    A(f'v_and_b32 v{V_CB+1}, 0xffff0000, v{V_MOD+6}')

def hbuild(A):
    H = V_B + 64; X = V_B + 80; RS = V_B + 96; O = V_B + 112
    for k in range(8):
        A(f'v_lshlrev_b32 v{RS+2*k}, 16, v{V_ST+2*k}')
        A(f'v_and_b32 v{RS+2*k+1}, 0xffff0000, v{V_ST+2*k}')
    for k in range(8):
        A(f'v_rcp_f32 v{RS+2*k}, v{RS+2*k}')
        A(f'v_lshlrev_b32 v{X+2*k}, 16, v{V_X+k}')
        A(f'v_and_b32 v{X+2*k+1}, 0xffff0000, v{V_X+k}')
    for k in range(8):
        A(f'v_pk_add_f32 {v(X+2*k,2)}, {v(X+2*k,2)}, {v(RS+2*k,2)} op_sel:[0,1] op_sel_hi:[1,1] neg_lo:[0,1] neg_hi:[0,1]')
        A(f'v_pk_mul_f32 {v(H+2*k,2)}, {v(V_CA,2)}, {v(RS+2*k,2)} op_sel:[0,0] op_sel_hi:[1,0]')
    for k in range(8):
        A(f'v_pk_fma_f32 {v(H+2*k,2)}, {v(X+2*k,2)}, {v(H+2*k,2)}, {v(V_SA,2)}')
    for ch in range(2):
        for j in range(4):
            A(f'v_cvt_pk_bf16_f32 v{O+4*ch+j}, v{H+4*j+ch}, v{H+4*j+2+ch}')
    A(f'v_lshlrev_b32 v{V_T+1}, 4, v{V_TAU}')
    A(f'v_lshlrev_b32 v{V_T+2}, 5, v{V_TAU}')
    for ch in range(2):
        A(f'ds_write_b128 v{V_T+1}, {v(O+4*ch,4)} offset:{L_UT+ch*UTCH+480}')
    A(f'ds_write_b128 v{V_T+2}, {v(V_X,4)} offset:{L_XT}')
    A(f'ds_write_b128 v{V_T+2}, {v(V_X+4,4)} offset:{L_XT+16}')

V_AA = 50
V_BA = 54
def conv_addr(A):
    T = V_T
    A(f'v_and_b32 v{T}, 15, v1')
    A(f'v_lshrrev_b32 v{T+1}, 4, v1')
    A(f'v_lshlrev_b32 v{T+2}, 3, v{T+1}')
    A(f'v_sub_u32 v{T+2}, v{T+2}, v{T}')
    A(f'v_add_u32 v{T+2}, 2031, v{T+2}')
    A(f'v_and_b32 v{T+3}, 1, v{T+2}')
    A(f'v_mul_u32_u24 v{T+3}, {R1OFF}, v{T+3}')
    A(f'v_lshrrev_b32 v{T+2}, 1, v{T+2}')
    A(f'v_lshl_add_u32 v{T+2}, v{T+2}, 2, v{T+3}')
    A('s_lshr_b32 s4, s3, 1')
    A(f's_mul_i32 s5, s4, {RTCH}')
    A('s_and_b32 s6, s3, 1')
    A('s_lshl_b32 s6, s6, 6')
    A('s_sub_u32 s5, s5, s6')
    A(f's_add_u32 s5, s5, {L_RT - 128*7}')
    for g in range(4):
        A(f'v_add_u32 v{V_AA+g}, s5, v{T+2}')
        if g < 3: A('s_sub_u32 s5, s5, 1024')
    A(f's_mul_i32 s5, s4, {UTCH}')
    A('s_sub_u32 s5, s5, s6')
    A(f's_add_u32 s5, s5, {L_UT + 64}')
    A(f'v_lshlrev_b32 v{V_BA}, 5, v{T}')
    A(f'v_lshl_add_u32 v{V_BA}, v{T+1}, 4, v{V_BA}')
    A(f'v_add_u32 v{V_BA}, s5, v{V_BA}')

def conv_main(A):
    loads = []
    seenB = set()
    mf = []
    for n in range(32):
        ab = V_A + 4*(n % 8); o = 32*(7 - n % 8)
        loads.append((f'ds_read2_b32 {v(ab,2)}, v{V_AA+n//8} offset0:{o} offset1:{o+1}', ('A', n)))
        loads.append((f'ds_read2_b32 {v(ab+2,2)}, v{V_AA+n//8} offset0:{o+2} offset1:{o+3}', ('A', n)))
        for t in range(n >> 2, 8):
            m = 4*t - n + 3
            if m not in seenB:
                seenB.add(m)
                loads.append((f'ds_read_b128 {v(V_B+4*m,4)}, v{V_BA} offset:{128*m}', ('B', m)))
            mf.append((t, n, m))
    last = {}
    for i, (_, k) in enumerate(loads): last[k] = i
    issued = 0; done = 0
    first = set()
    def can_issue(cur_n):
        if issued >= len(loads) or issued - done >= 15: return False
        k = loads[issued][1]
        if k[0] == 'A' and k[1] >= cur_n + 8: return False
        return True
    while can_issue(0) and issued < 14:
        A(loads[issued][0]); issued += 1
    for idx, (t, n, m) in enumerate(mf):
        needi = max(last[('A', n)], last[('B', m)])
        while issued <= needi:
            assert can_issue(n) or True
            if issued - done >= 15:
                A('s_waitcnt lgkmcnt(8)'); done = issued - 8
            A(loads[issued][0]); issued += 1
        if needi >= done:
            A(f's_waitcnt lgkmcnt({issued - needi - 1})'); done = needi + 1
        c = v(V_ACC+4*t,4) if t in first else '0'
        first.add(t)
        A(f'v_mfma_f32_16x16x32_bf16 {v(V_ACC+4*t,4)}, {v(V_A+4*(n%8),4)}, {v(V_B+4*m,4)}, {c}')
        for _ in range(2 if n < 4 else 1):
            if can_issue(n): A(loads[issued][0]); issued += 1

def conv_epilogue(A, flags=''):
    T = V_T
    A(f'v_and_b32 v{T}, 15, v1')
    A(f'v_lshrrev_b32 v{T+1}, 4, v1')
    A(f'v_mul_u32_u24 v{T+1}, 320, v{T+1}')
    A(f'v_lshl_add_u32 v{T}, v{T}, 4, v{T+1}')
    A(f's_mul_i32 s4, s3, {8*1280}')
    A(f's_add_u32 s4, s4, {L_RED}')
    A(f'v_add_u32 v{T}, s4, v{T}')
    A(f'v_and_b32 v{T+1}, 3, v1')
    A(f'v_mul_u32_u24 v{T+1}, 320, v{T+1}')
    A(f'v_lshrrev_b32 v{T+2}, 2, v1')
    A(f'v_lshl_add_u32 v{T+1}, v{T+2}, 4, v{T+1}')
    A(f's_mul_i32 s4, s3, {2*1280}')
    A(f's_add_u32 s4, s4, {L_RED}')
    A(f'v_add_u32 v{T+1}, s4, v{T+1}')
    A('s_lshl_b32 s4, s3, 10')
    A(f'v_lshl_add_u32 v{T+2}, v1, 3, s4')
    A(f'v_lshlrev_b32 v{T+3}, 1, v{T+2}')
    HR = V_A; XR = V_A + 8
    for tt in range(2):
        for ch in range(2):
            A(f'ds_read_b64 {v(HR+4*tt+2*ch,2)}, v{T+2} offset:{L_UT+ch*UTCH+480+512*tt}')
        A(f'ds_read_b128 {v(XR+4*tt,4)}, v{T+3} offset:{L_XT+1024*tt}')
    for t in range(8):
        A(f'ds_write_b128 v{T}, {v(V_ACC+4*t,4)} offset:{1280*t}')
    A('s_waitcnt lgkmcnt(8)')
    HF = V_B; XF = V_B + 16; Y = V_B + 32; P = V_B + 64; U = V_B + 72
    for tt in range(2):
        for ch in range(2):
            for j in range(2):
                A(f'v_lshlrev_b32 v{HF+8*tt+4*ch+2*j}, 16, v{HR+4*tt+2*ch+j}')
                A(f'v_and_b32 v{HF+8*tt+4*ch+2*j+1}, 0xffff0000, v{HR+4*tt+2*ch+j}')
        for i in range(4):
            A(f'v_lshlrev_b32 v{XF+8*tt+i}, 16, v{XR+4*tt+i}')
            A(f'v_and_b32 v{XF+8*tt+4+i}, 0xffff0000, v{XR+4*tt+i}')
    A('s_waitcnt lgkmcnt(0)')
    A('s_barrier')
    for tt in range(2):
        for w in range(4):
            A(f'ds_read_b128 {v(Y+16*tt+4*w,4)}, v{T+1} offset:{w*8*1280+1280*tt}')
    A(f's_lshl_b32 s4, s{S_PAIR}, 13')
    A('s_lshl_b32 s5, s3, 11')
    A('s_add_u32 s4, s4, s5')
    A(f's_add_u32 s5, s4, {WS_X1S:#x}')
    A(f's_add_u32 s4, s4, {WS_X1P:#x}')
    A(f'v_lshlrev_b32 v{T}, 4, v1')
    for tt in range(2):
        A(f's_waitcnt lgkmcnt({4*(1-tt)})')
        for ch in range(2):
            for j in range(2):
                y = Y + 16*tt + 8*ch + 2*j; h = HF + 8*tt + 4*ch + 2*j; x = XF + 8*tt + 4*ch + 2*j
                A(f'v_pk_add_f32 {v(y,2)}, {v(y,2)}, {v(y+4,2)}')
                A(f'v_pk_fma_f32 {v(y,2)}, {v(h,2)}, {v(V_DKF,2)}, {v(y,2)} op_sel:[0,{ch},0] op_sel_hi:[1,{ch},1]')
                A(f'v_pk_fma_f32 {v(y,2)}, {v(y,2)}, {v(V_GA,2)}, {v(x,2)} op_sel:[0,{ch},0] op_sel_hi:[1,{ch},1]')
        for i in range(4):
            A(f'v_cvt_pk_bf16_f32 v{P+4*tt+i}, v{Y+16*tt+i}, v{Y+16*tt+8+i}')
        A(f'buffer_store_dwordx4 {v(P+4*tt,4)}, v{T}, {s(SRD_WS,4)}, s4 offen offset:{1024*tt} {flags}')
        for i in range(4):
            A(f'v_lshlrev_b32 v{U+2*i}, 16, v{P+4*tt+i}')
            A(f'v_and_b32 v{U+2*i+1}, 0xffff0000, v{P+4*tt+i}')
        for i in range(4):
            A(f'v_pk_mul_f32 {v(U+2*i,2)}, {v(U+2*i,2)}, {v(V_CB,2)}')
        for i in range(4):
            A(f'v_cvt_pk_bf16_f32 v{U+8+4*tt+i}, v{U+2*i}, v{U+2*i+1}')
        A(f'buffer_store_dwordx4 {v(U+8+4*tt,4)}, v{T}, {s(SRD_WS,4)}, s5 offen offset:{1024*tt} {flags}')

def k2(name):
    A = Asm()
    A('s_cmp_ge_u32 s2, 256')
    A('s_cbranch_scc1 L_k2_end')
    A('v_mov_b32 v49, 0') if DIAG else None
    stamp(A, 49, 0)
    kernarg(A)
    setup_ids(A)
    pair_id(A)
    A('s_waitcnt lgkmcnt(0)')
    srd(A, SRD_WS, P_WS, WS_END); srd(A, SRD_X, P_X, 2048*1024)
    params_issue(A)
    n = gather_issue(A) + stats_issue(A) + mod_issue(A)
    stamp(A, 49, 1)
    const_setup(A)
    stamp(A, 49, 2)
    A(f's_waitcnt vmcnt({n})')
    stamp(A, 49, 3)
    kgen_valu(A)
    A('s_waitcnt lgkmcnt(0)')
    stamp(A, 49, 4)
    A('s_barrier')
    kgen_mfma(A)
    A('s_waitcnt lgkmcnt(0)')
    stamp(A, 49, 5)
    A('s_barrier')
    expand(A)
    stamp(A, 49, 6)
    A('s_waitcnt vmcnt(0)')
    stamp(A, 49, 7)
    mod_unpack(A)
    hbuild(A)
    conv_addr(A)
    A('s_waitcnt lgkmcnt(0)')
    stamp(A, 49, 8)
    A('s_barrier')
    conv_main(A)
    stamp(A, 49, 9)
    conv_epilogue(A)
    stamp(A, 49, 10)
    stamp_flush(A, 49, 1, 60)
    A.label('L_k2_end')
    A('s_endpgm')
    return kernel_head(name) + A.finish(), kernel_desc(name, 256, 256)
```

```python
from common import *
from jobs1 import setup_ids, finish_stats

class Tracker:
    def __init__(self, A, name, cap):
        self.A = A; self.name = name; self.cap = cap; self.issued = 0; self.done = 0; self.last = {}
    def issue(self, text, key=None):
        if self.issued - self.done >= self.cap and self.name == 'lgkmcnt':
            raise RuntimeError('too many outstanding ' + self.name)
        self.A(text)
        if key is not None: self.last[key] = self.issued
        self.issued += 1
    def wait(self, key):
        i = self.last[key]
        if i >= self.done:
            n = self.issued - i - 1
            assert n <= self.cap, (self.name, n)
            self.A(f's_waitcnt {self.name}({n})'); self.done = i + 1
    def drain(self):
        self.A(f's_waitcnt {self.name}(0)'); self.done = self.issued

G1_CB = 114688; G1_ST = G1_CB + 2048; G1_VV = G1_ST + 256; G1_END = G1_VV + 1024
S_RB, S_CBK, S_ROT = 76, 77, 78
ACC = 16; WF = 128; XF = 184; XW = 216; CBF = 232; XACC = 240; TMP = 248
VX = 2
VDMA = 6; VWA = 7; VWB = 8; VXA = 9; VXB = 10; VCA = 11; VST = 12

def g1_ids(A):
    A(f's_and_b32 s4, s2, 7')
    A(f's_lshr_b32 s5, s2, 3')
    A(f's_lshr_b32 s{S_RB}, s4, 1')
    A(f's_lshl_b32 s{S_RB}, s{S_RB}, 1')
    A(f's_lshr_b32 s6, s5, 4')
    A(f's_add_u32 s{S_RB}, s{S_RB}, s6')
    A(f's_and_b32 s{S_CBK}, s4, 1')
    A(f's_lshl_b32 s{S_CBK}, s{S_CBK}, 4')
    A(f's_and_b32 s7, s5, 15')
    A(f's_add_u32 s{S_CBK}, s{S_CBK}, s7')
    A(f's_lshl_b32 s6, s6, 3')
    A(f's_add_u32 s{S_ROT}, s7, s6')

def g1_addr(A):
    T = TMP
    A(f'v_and_b32 v{T}, 15, v1')
    A(f'v_lshrrev_b32 v{T+1}, 4, v1')
    A(f's_lshl_b32 s4, s{S_RB}, 10')
    A('s_lshl_b32 s5, s3, 8')
    A('s_add_u32 s79, s4, s5')
    A(f'v_lshlrev_b32 v{VX}, 15, v{T+1}')
    A(f'v_lshl_add_u32 v{VX}, v{T}, 4, v{VX}')
    A(f'v_add_u32 v{VX}, s79, v{VX}')
    for j in range(1, 4): A(f'v_add_u32 v{VX+j}, {8192*j}, v{VX}')
    A(f's_mul_i32 s4, s{S_CBK}, {7*16384}')
    A(f's_add_u32 s4, s4, {WS_W1F:#x}')
    A(f'v_lshl_add_u32 v{VDMA}, v1, 4, s4')

def sn(A, d, n, extra=None):
    A(f's_add_u32 s{d}, s{S_ROT}, {n}')
    if extra is not None: A(f's_add_u32 s{d}, s{d}, s{extra}')
    A(f's_and_b32 s{d}, s{d}, 15')

def g1_dma_ops(g):
    ops = []
    for Tl in range(7):
        def f(A, VM, Tl=Tl):
            if Tl == 0:
                sn(A, 80, 4*g, 3); A('s_lshl_b32 s80, s80, 10')
            else:
                A('s_add_u32 s80, s80, 0x4000')
            A('s_mov_b32 m0, s80')
            VM.issue(f'buffer_load_dwordx4 v{VDMA}, {s(SRD_WS,4)}, m0 offen lds', ('dma', g))
        ops.append(f)
    return ops

def g1_x_ops(n, flags=''):
    ops = []
    for j in range(4):
        def f(A, VM, j=j):
            if j == 0:
                sn(A, 81, n); A('s_lshl_b32 s81, s81, 17'); A(f's_add_u32 s81, s81, {WS_X1S:#x}')
            VM.issue(f'buffer_load_dwordx4 {a(16*n+4*j,4)}, v{VX+j}, {s(SRD_WS,4)}, s81 offen {flags}', ('x', n))
        ops.append(f)
    return ops

def g1_stats_issue(A, VM, flags=''):
    A(f's_lshl_b32 s4, s{S_RB}, 10')
    A(f's_lshl_b32 s5, s{S_CBK}, 5')
    A('s_add_u32 s82, s4, s5')
    A(f's_add_u32 s4, s82, {WS_X1P:#x}')
    A(f'v_lshlrev_b32 v{TMP+2}, 13, v0')
    VM.issue(f'buffer_load_dwordx4 {v(ACC,4)}, v{TMP+2}, {s(SRD_WS,4)}, s4 offen {flags}')
    VM.issue(f'buffer_load_dwordx4 {v(ACC+4,4)}, v{TMP+2}, {s(SRD_WS,4)}, s4 offen offset:16 {flags}', 'st')

def g1_stats_partial(A):
    D = ACC; S = ACC + 8; Q = ACC + 16
    A('s_mov_b32 s6, 0x3f803f80')
    for k in range(8):
        A(f'v_dot2_f32_bf16 v{S+k}, v{D+k}, s6, 0')
        A(f'v_dot2_f32_bf16 v{Q+k}, v{D+k}, v{D+k}, 0')
    for k in range(8): A(f'v_permlane32_swap_b32 v{S+k}, v{Q+k}')
    for k in range(8): A(f'v_add_f32 v{S+k}, v{S+k}, v{Q+k}')
    for k in range(4): A(f'v_permlane16_swap_b32 v{S+k}, v{S+k+4}')
    for k in range(4): A(f'v_add_f32 v{S+k}, v{S+k}, v{S+k+4}')
    for r in (8, 4, 2, 1):
        for k in range(4): A(f'v_add_f32_dpp v{S+k}, v{S+k}, v{S+k} row_ror:{r} {DPPM}')
    A(f'v_and_b32 v{Q}, 48, v1')
    A('s_lshl_b32 s4, s3, 6')
    A(f's_add_u32 s4, s4, {G1_ST}')
    A(f'v_add_u32 v{Q}, s4, v{Q}')
    A(f'ds_write_b128 v{Q}, {v(S,4)}')

def g1_stats_final(A, VM):
    D = ACC
    A(f'v_and_b32 v{D+8}, 7, v1')
    A(f'v_lshlrev_b32 v{D+8}, 2, v{D+8}')
    A(f'v_add_u32 v{D+9}, {G1_ST}, v{D+8}')
    for w in range(4): A(f'ds_read2_b32 {v(D+2*w,2)}, v{D+9} offset0:{16*w} offset1:{16*w+8}')
    A('s_waitcnt lgkmcnt(0)')
    A(f'v_pk_add_f32 {v(D,2)}, {v(D,2)}, {v(D+2,2)}')
    A(f'v_pk_add_f32 {v(D+4,2)}, {v(D+4,2)}, {v(D+6,2)}')
    A(f'v_pk_add_f32 {v(D,2)}, {v(D,2)}, {v(D+4,2)}')
    finish_stats(A, D, D+1, D+2)
    A(f's_add_u32 s4, s82, {WS_STATS2:#x}')
    A('s_mov_b64 exec, 0xff')
    VM.issue(f'buffer_store_dword v{D+2}, v{D+8}, {s(SRD_WS,4)}, s4 offen sc1')
    A('s_mov_b64 exec, -1')

def g1_lds_addr(A, n):
    sn(A, 83, n)
    A('s_lshl_b32 s84, s83, 10')
    A('s_lshl_b32 s83, s83, 6')
    return [f'v_lshl_add_u32 v{VWA}, v1, 4, s84',
            f'v_add_u32 v{VWB}, 0x10000, v{VWA}',
            f'v_add_u32 v{VXA}, s85, v{VWA}',
            f'v_add_u32 v{VXB}, s86, v{VWA}',
            f'v_add_u32 v{VCA}, s83, v{TMP+3}']

def g1_reads(n):
    b = n & 1
    r = []
    for T in range(7):
        r.append(f'ds_read_b128 {v(WF+28*b+4*T,4)}, v{VWA if T < 4 else VWB} offset:{16384*(T&3)}')
    r.append(f'ds_read_b128 {v(XW+8*b,4)}, v{VXA}')
    r.append(f'ds_read_b128 {v(XW+8*b+4,4)}, v{VXB}')
    r.append(f'ds_read_b128 {v(CBF+4*b,4)}, v{VCA}')
    return r

def g1_movs(n):
    b = n & 1
    return [f'v_accvgpr_read_b32 v{XF+16*b+4*t+j}, a{16*n+4*j+t}' for t in range(4) for j in range(4)]

def g1_body(A, VM, xflags='', hflags=''):
    T = TMP
    A('s_lshl_b32 s85, s3, 14')
    A('s_add_u32 s86, s3, 4')
    A('s_min_u32 s86, s86, 6')
    A('s_lshl_b32 s86, s86, 14')
    A(f'v_and_b32 v{T+3}, 1, v1')
    A(f'v_xor_b32 v{T+3}, 1, v{T+3}')
    A(f'v_lshlrev_b32 v{T+3}, 10, v{T+3}')
    A(f'v_and_b32 v{T+4}, 48, v1')
    A(f'v_add3_u32 v{T+3}, v{T+3}, v{T+4}, s87')
    VM.wait('st')
    stamp(A, 255, 2)
    g1_stats_partial(A)
    for t in g1_lds_addr(A, 0): A(t)
    VM.wait(('dma', 0))
    A('s_waitcnt lgkmcnt(0)')
    stamp(A, 255, 3)
    A('s_barrier')
    for r in g1_reads(0): A(r)
    g1_stats_final(A, VM)
    VM.wait(('x', 0))
    stamp(A, 255, 4)
    for m in g1_movs(0): A(m)
    for n in range(16):
        b = n & 1
        mf = []
        for T_ in range(7):
            for t in range(4):
                d = v(ACC + 16*T_ + 4*t, 4)
                mf.append(f'v_mfma_f32_16x16x32_bf16 {d}, {v(WF+28*b+4*T_,4)}, {v(XF+16*b+4*t,4)}, {d if n else "0"}')
        for e in range(2):
            d = v(XACC + 4*e, 4)
            mf.append(f'v_mfma_f32_16x16x32_bf16 {d}, {v(XW+8*b+4*e,4)}, {v(CBF+4*b,4)}, {d if n else "0"}')
        fill = []
        if n + 1 < 16:
            fill.append(lambda A, VM, n=n: [A(t) for t in g1_lds_addr(A, n+1)[:2]])
            fill.append(lambda A, VM: [A(f'v_add_u32 v{VXA}, s85, v{VWA}'), A(f'v_add_u32 v{VXB}, s86, v{VWA}')])
            def sync(A, VM, n=n):
                A(f'v_add_u32 v{VCA}, s83, v{TMP+3}')
                if (n + 1) % 4 == 0:
                    VM.wait(('dma', (n+1)//4)); A('s_barrier')
            fill.append(sync)
            for r in g1_reads(n+1): fill.append(lambda A, VM, r=r: A(r))
            mv = g1_movs(n+1)
            for k in range(0, 16, 2):
                def f(A, VM, k=k, n=n, mv=mv):
                    if k == 0: VM.wait(('x', n+1))
                    A(mv[k]); A(mv[k+1])
                fill.append(f)
        vm = []
        if n < 8:
            g = 2 + n // 4
            allops = g1_dma_ops(g) + sum([g1_x_ops(4*g+k, xflags) for k in range(4)], [])
            lo = (n % 4) * 6; vm = allops[lo:lo+6] if n % 4 < 3 else allops[18:]
        if n == 12:
            def st2(A, VM):
                A(f'v_and_b32 v{TMP+4}, 15, v1')
                A(f'v_lshlrev_b32 v{TMP+4}, 4, v{TMP+4}')
                A(f's_add_u32 s88, s79, {WS_STATS2:#x}')
                VM.issue(f'buffer_load_dwordx4 {v(VST,4)}, v{TMP+4}, {s(SRD_WS,4)}, s88 offen sc1', 'st2')
            vm = [st2]
        A('s_waitcnt lgkmcnt(0)')
        if n % 4 == 0 and n: stamp(A, 255, 4 + n // 4)
        fill = fill + vm
        for i, m in enumerate(mf):
            A(m)
            if i < len(fill): fill[i](A, VM)
        assert len(fill) <= len(mf)
    stamp(A, 255, 8)
    A(f'v_and_b32 v{T}, 1, v1')
    A(f'v_lshlrev_b32 v{T}, 6, v{T}')
    A(f'v_and_b32 v{T+1}, 48, v1')
    A('s_lshl_b32 s4, s3, 7')
    A(f's_add_u32 s4, s4, {G1_VV}')
    A(f'v_add3_u32 v{T}, v{T}, v{T+1}, s4')
    A(f'v_add_u32 v{T+1}, {G1_VV}, v{T+1}')
    A(f'ds_write_b128 v{T}, {v(XACC,4)}')
    A(f'ds_write_b128 v{T}, {v(XACC+4,4)} offset:512')
    VM.wait('st2')
    A('s_mov_b32 s7, 0x8000')
    A.label('L_g1_poll')
    A(f'v_min_u32 v{T+2}, v{VST}, v{VST+1}')
    A(f'v_min3_u32 v{T+2}, v{T+2}, v{VST+2}, v{VST+3}')
    A(f'v_cmp_eq_u32 vcc, 0, v{T+2}')
    A('s_cbranch_vccz L_g1_ok')
    A('s_sub_u32 s7, s7, 1')
    A('s_cbranch_scc1 L_g1_ok')
    A('s_sleep 2')
    A(f'buffer_load_dwordx4 {v(VST,4)}, v{TMP+4}, {s(SRD_WS,4)}, s88 offen sc1')
    A('s_waitcnt vmcnt(0)')
    A('s_branch L_g1_poll')
    A.label('L_g1_ok')
    stamp(A, 255, 9)
    RC = XF
    for t in range(4):
        A(f'v_lshlrev_b32 v{RC+4*t}, 16, v{VST+t}')
        A(f'v_and_b32 v{RC+4*t+2}, 0xffff0000, v{VST+t}')
    for t in range(4): A(f'v_rcp_f32 v{RC+4*t}, v{RC+4*t}')
    A('s_waitcnt lgkmcnt(0)')
    A('s_barrier')
    V1 = WF
    for T_ in range(7):
        A(f'ds_read_b128 {v(V1+8*T_,4)}, v{T+1} offset:{128*T_}')
        A(f'ds_read_b128 {v(V1+8*T_+4,4)}, v{T+1} offset:{128*T_+64}')
    for t in range(4):
        A(f'v_mul_f32 v{RC+4*t+1}, 0xbfb8aa3b, v{RC+4*t}')
        A(f'v_mul_f32 v{RC+4*t+2}, -v{RC+4*t+2}, v{RC+4*t}')
    A('s_mov_b32 s4, 0xbfb8aa3b')
    A('s_mov_b32 s5, 0xbfb8aa3b')
    A(f'v_lshrrev_b32 v{T+5}, 4, v1')
    A(f'v_lshlrev_b32 v{T+5}, 13, v{T+5}')
    A(f'v_add_u32 v{T+5}, v{T+5}, v{TMP+4}')
    A(f's_mul_i32 s6, s{S_CBK}, {28*8192}')
    A('s_add_u32 s6, s6, s79')
    A(f's_add_u32 s6, s6, {WS_HHP:#x}')
    C = XF + 16; H = XW
    for T_ in range(7):
        A(f's_waitcnt lgkmcnt({12 - 2*T_})')
        v1 = V1 + 8*T_; v2 = v1 + 4
        A(f'v_pk_mul_f32 {v(v1,2)}, {v(v1,2)}, s[4:5]')
        A(f'v_pk_mul_f32 {v(v2,2)}, {v(v2,2)}, s[4:5]')
        h = H + 4*(T_ & 1)
        for t in range(4):
            c = C + 4*t
            A(f'v_pk_fma_f32 {v(c,2)}, {v(v1,2)}, {v(RC+4*t+2,2)}, {v(v2,2)} op_sel:[0,0,0] op_sel_hi:[1,0,1]')
            A(f'v_pk_fma_f32 {v(c+2,2)}, {v(v1+2,2)}, {v(RC+4*t+2,2)}, {v(v2+2,2)} op_sel:[0,0,0] op_sel_hi:[1,0,1]')
        for t in range(4):
            c = C + 4*t; ac = ACC + 16*T_ + 4*t
            A(f'v_pk_fma_f32 {v(c,2)}, {v(ac,2)}, {v(RC+4*t,2)}, {v(c,2)} op_sel:[0,1,0] op_sel_hi:[1,1,1]')
            A(f'v_pk_fma_f32 {v(c+2,2)}, {v(ac+2,2)}, {v(RC+4*t,2)}, {v(c+2,2)} op_sel:[0,0,0] op_sel_hi:[1,0,1]')
        for t in range(4):
            A(f'v_exp_f32 v{C+4*t}, v{C+4*t}')
            A(f'v_exp_f32 v{C+4*t+1}, v{C+4*t+1}')
        for t in range(4): A(f'v_pk_add_f32 {v(C+4*t,2)}, {v(C+4*t,2)}, 1.0 op_sel_hi:[1,0]')
        for t in range(4):
            A(f'v_rcp_f32 v{C+4*t}, v{C+4*t}')
            A(f'v_rcp_f32 v{C+4*t+1}, v{C+4*t+1}')
        for t in range(4): A(f'v_pk_mul_f32 {v(C+4*t,2)}, {v(C+4*t,2)}, {v(C+4*t+2,2)}')
        for t in range(4): A(f'v_cvt_pk_bf16_f32 v{h+t}, v{C+4*t}, v{C+4*t+1}')
        VM.issue(f'buffer_store_dwordx4 {v(h,4)}, v{T+5}, {s(SRD_WS,4)}, s6 offen {hflags}')
        if T_ < 6: A('s_add_u32 s6, s6, 0x8000')

def g1_prologue(A, VM, xflags=''):
    g1_addr(A)
    g1_stats_issue(A, VM, xflags)
    A(f's_mov_b32 s87, {G1_CB}')
    A(f'v_lshlrev_b32 v{TMP+2}, 4, v1')
    A(f's_mov_b32 s4, {WS_MODP + 3072:#x}')
    A('s_mov_b32 m0, s87')
    VM.issue(f'buffer_load_dwordx4 v{TMP+2}, {s(SRD_WS,4)}, s4 offen lds')
    VM.issue(f'buffer_load_dwordx4 v{TMP+2}, {s(SRD_WS,4)}, s4 offen offset:1024 lds')
    for g in range(2):
        for f in g1_dma_ops(g): f(A, VM)
        for k in range(4):
            for f in g1_x_ops(4*g+k, xflags): f(A, VM)

def k3(name):
    A = Asm()
    A('s_cmp_ge_u32 s2, 256')
    A('s_cbranch_scc1 L_k3_end')
    A('v_mov_b32 v255, 0') if DIAG else None
    stamp(A, 255, 0)
    kernarg(A, lo=False, hi=False)
    setup_ids(A)
    g1_ids(A)
    A('s_waitcnt lgkmcnt(0)')
    srd(A, SRD_WS, P_WS, WS_END)
    VM = Tracker(A, 'vmcnt', 63)
    g1_prologue(A, VM)
    stamp(A, 255, 1)
    g1_body(A, VM)
    stamp(A, 255, 12)
    stamp_flush(A, 255, 2, 2)
    A.label('L_k3_end')
    A('s_endpgm')
    return kernel_head(name) + A.finish(), kernel_desc(name, 512, 256)

S_R64, S_NB, S_K0 = 89, 90, 91
A2 = 16; RAW = 96; FR = 224; X1R = 80; GBR = 88
VH = 2; VW2 = 6
G2_END = 4 * 4 * 4096

def g2_ids(A):
    A('s_and_b32 s4, s2, 7')
    A('s_lshr_b32 s5, s2, 3')
    A(f's_lshl_b32 s{S_R64}, s4, 2')
    A('s_lshr_b32 s6, s5, 3')
    A(f's_add_u32 s{S_R64}, s{S_R64}, s6')
    A(f's_and_b32 s{S_NB}, s5, 7')
    A(f's_mul_i32 s{S_K0}, s{S_NB}, 7')
    A('s_mul_i32 s6, s3, 14')
    A(f's_add_u32 s{S_K0}, s{S_K0}, s6')

def kap(A, d, n):
    A(f's_add_u32 s{d}, s{S_K0}, {n}')
    A(f's_sub_u32 s4, s{d}, 56')
    A(f's_cmp_ge_u32 s{d}, 56')
    A(f's_cselect_b32 s{d}, s4, s{d}')

def g2_waddr(A, tmp):
    A(f's_mul_i32 s4, s{S_NB}, {4*57344}')
    A(f's_add_u32 s4, s4, {WS_W2F:#x}')
    A(f'v_lshl_add_u32 v{VW2}, v1, 4, s4')
    for c in range(1, 4): A(f'v_add_u32 v{VW2+c}, {57344*c}, v{VW2}')

def g2_haddr(A, tmp):
    A(f'v_and_b32 v{tmp}, 15, v1')
    A(f'v_lshrrev_b32 v{tmp+1}, 4, v1')
    A(f's_lshl_b32 s4, s{S_R64}, 8')
    A(f'v_lshlrev_b32 v{VH}, 15, v{tmp+1}')
    A(f'v_lshl_add_u32 v{VH}, v{tmp}, 4, v{VH}')
    A(f'v_add_u32 v{VH}, s4, v{VH}')
    for j in range(1, 4): A(f'v_add_u32 v{VH+j}, {8192*j}, v{VH}')

def g2_w_ops(n):
    ops = []
    for c in range(4):
        def f(A, VM, c=c):
            if c == 0: kap(A, 92, n); A('s_lshl_b32 s92, s92, 10')
            VM.issue(f'buffer_load_dwordx4 {a(16*n+4*c,4)}, v{VW2+c}, {s(SRD_WS,4)}, s92 offen', ('w', n))
        ops.append(f)
    return ops

def g2_h_ops(n, flags=''):
    ops = []
    for j in range(4):
        def f(A, VM, j=j):
            if j == 0: kap(A, 93, n); A('s_lshl_b32 s93, s93, 17'); A(f's_add_u32 s93, s93, {WS_HHP:#x}')
            VM.issue(f'buffer_load_dwordx4 {v(RAW+16*(n%8)+4*j,4)}, v{VH+j}, {s(SRD_WS,4)}, s93 offen {flags}', ('h', n))
        ops.append(f)
    return ops

def g2_epi_loads(A, VM, tmp, flags=''):
    A(f'v_and_b32 v{tmp}, 15, v1')
    A(f'v_lshrrev_b32 v{tmp+1}, 4, v1')
    A(f'v_lshlrev_b32 v{tmp+2}, 16, v{tmp+1}')
    A(f'v_lshl_add_u32 v{tmp+2}, v{tmp}, 4, v{tmp+2}')
    A(f's_lshl_b32 s4, s{S_NB}, 18')
    A(f's_lshl_b32 s5, s{S_R64}, 8')
    A('s_add_u32 s4, s4, s5')
    A('s_lshl_b32 s5, s3, 2')
    A('s_add_u32 s4, s4, s5')
    A(f's_add_u32 s4, s4, {WS_X1P:#x}')
    for jj in range(8):
        VM.issue(f'buffer_load_dword v{X1R+jj}, v{tmp+2}, {s(SRD_WS,4)}, s4 offen {flags}')
        if jj < 7: A('s_add_u32 s4, s4, 0x2000')
    A(f'v_lshlrev_b32 v{tmp+2}, 5, v{tmp+1}')
    A(f's_lshl_b32 s4, s{S_NB}, 7')
    A(f's_add_u32 s4, s4, {WS_MODP + 5*1024:#x}')
    VM.issue(f'buffer_load_dwordx4 {v(GBR,4)}, v{tmp+2}, {s(SRD_WS,4)}, s4 offen')
    VM.issue(f'buffer_load_dwordx4 {v(GBR+4,4)}, v{tmp+2}, {s(SRD_WS,4)}, s4 offen offset:16', 'epi')

def g2_movs(n):
    b = n & 1
    return [f'v_mov_b32 v{FR+16*b+4*t+j}, v{RAW+16*(n%8)+4*j+t}' for t in range(4) for j in range(4)]

def g2_body(A, VM, later):
    VM.wait(('h', 0))
    stamp(A, 15, 2)
    for m in g2_movs(0): A(m)
    for n in range(14):
        b = n & 1
        VM.wait(('w', n))
        if n in (4, 8, 12): stamp(A, 15, 2 + n // 4)
        mf = []
        for t in range(4):
            for c in range(4):
                d = v(A2 + 16*t + 4*c, 4)
                mf.append(f'v_mfma_f32_16x16x32_bf16 {d}, {a(16*n+4*c,4)}, {v(FR+16*b+4*t,4)}, {d if n else "0"}')
        fill = list(later.get(n, []))
        if n + 1 < 14:
            mv = g2_movs(n+1)
            for k in range(0, 16, 2):
                def f(A, VM, k=k, n=n, mv=mv):
                    if k == 0: VM.wait(('h', n+1))
                    A(mv[k]); A(mv[k+1])
                fill.append(f)
        assert len(fill) <= 16
        for i, m in enumerate(mf):
            A(m)
            if i < len(fill): fill[i](A, VM)
    stamp(A, 15, 6)
    T = 10
    A('s_lshl_b32 s4, s3, 12')
    A(f'v_lshl_add_u32 v{T}, v1, 4, s4')
    A('s_lshl_b32 s4, s3, 14')
    A(f'v_lshl_add_u32 v{T+1}, v1, 4, s4')
    for t in range(4):
        for c in range(4):
            A(f'ds_write_b128 v{T}, {v(A2+16*t+4*c,4)} offset:{16384*t+1024*c}')
            if (4*t + c) % 8 == 7: A('s_waitcnt lgkmcnt(0)')
    VM.wait('epi')
    XF2 = RAW + 64; GF = RAW + 80
    for k in range(8):
        A(f'v_lshlrev_b32 v{XF2+2*k}, 16, v{X1R+k}')
        A(f'v_and_b32 v{XF2+2*k+1}, 0xffff0000, v{X1R+k}')
        A(f'v_lshlrev_b32 v{GF+2*k}, 16, v{GBR+k}')
        A(f'v_and_b32 v{GF+2*k+1}, 0xffff0000, v{GBR+k}')
    A('s_barrier')
    stamp(A, 15, 7)
    P = RAW
    for w in range(4):
        for c in range(4):
            A(f'ds_read_b128 {v(P+16*w+4*c,4)}, v{T+1} offset:{4096*w+1024*c}')
        if w == 1: A('s_waitcnt lgkmcnt(0)')
    A(f'v_and_b32 v{T+2}, 15, v1')
    A(f'v_lshlrev_b32 v{T+2}, 12, v{T+2}')
    A(f'v_lshrrev_b32 v{T+3}, 4, v1')
    A(f'v_lshl_add_u32 v{T+2}, v{T+3}, 5, v{T+2}')
    A(f's_lshl_b32 s4, s{S_R64}, 16')
    A('s_lshl_b32 s5, s3, 10')
    A('s_add_u32 s4, s4, s5')
    A(f's_lshl_b32 s5, s{S_NB}, 7')
    A('s_add_u32 s4, s4, s5')
    for k in range(8): A(f'v_pk_add_f32 {v(P+2*k,2)}, {v(P+2*k,2)}, {v(P+16+2*k,2)}')
    A('s_waitcnt lgkmcnt(0)')
    for k in range(8): A(f'v_pk_add_f32 {v(P+32+2*k,2)}, {v(P+32+2*k,2)}, {v(P+48+2*k,2)}')
    for k in range(8): A(f'v_pk_add_f32 {v(P+2*k,2)}, {v(P+2*k,2)}, {v(P+32+2*k,2)}')
    for r in range(4):
        for c in range(4):
            dd = 4*r + c
            A(f'v_fma_f32 v{XF2+dd}, v{P+4*c+r}, v{GF+dd}, v{XF2+dd}')
    O = A2
    for k in range(8): A(f'v_cvt_pk_bf16_f32 v{O+k}, v{XF2+2*k}, v{XF2+2*k+1}')
    A(f'buffer_store_dwordx4 {v(O,4)}, v{T+2}, {s(SRD_OUT,4)}, s4 offen')
    A(f'buffer_store_dwordx4 {v(O+4,4)}, v{T+2}, {s(SRD_OUT,4)}, s4 offen offset:16')

def k4(name):
    A = Asm()
    A('s_cmp_ge_u32 s2, 256')
    A('s_cbranch_scc1 L_k4_end')
    A('v_mov_b32 v15, 0') if DIAG else None
    stamp(A, 15, 0)
    kernarg(A, lo=False, hi=True)
    setup_ids(A)
    g2_ids(A)
    A('s_waitcnt lgkmcnt(0)')
    srd(A, SRD_WS, P_WS, WS_END); srd(A, SRD_OUT, P_OUT, 2048*1024)
    VM = Tracker(A, 'vmcnt', 63)
    g2_waddr(A, 10); g2_haddr(A, 10)
    for n in range(6):
        for f in g2_h_ops(n) + g2_w_ops(n): f(A, VM)
    g2_epi_loads(A, VM, 10)
    later = {n: g2_h_ops(n+6) + g2_w_ops(n+6) for n in range(8)}
    stamp(A, 15, 1)
    g2_body(A, VM, later)
    stamp(A, 15, 8)
    stamp_flush(A, 15, 3, 2)
    A.label('L_k4_end')
    A('s_endpgm')
    return kernel_head(name) + A.finish(), kernel_desc(name, 512, 256)
```

```python
from common import *

S_WAVE = 3
V_TID, V_LANE = 0, 1

def setup_ids(A):
    A('v_and_b32 v1, 63, v0')
    A('v_lshrrev_b32 v2, 6, v0')
    A('v_readfirstlane_b32 s3, v2')

def j1_issue(A, D, tmp):
    A('s_lshl_b32 s4, s2, 13')
    A('s_lshl_b32 s5, s3, 11')
    A('s_add_u32 s4, s4, s5')
    A(f'v_lshlrev_b32 v{tmp}, 4, v1')
    A(f'buffer_load_dwordx4 {v(D,4)}, v{tmp}, {s(SRD_X,4)}, s4 offen')
    A(f'buffer_load_dwordx4 {v(D+4,4)}, v{tmp}, {s(SRD_X,4)}, s4 offen offset:1024')

def finish_stats(A, SUM, SQ, T):
    A(f'v_mul_f32 v{SUM}, 0x3b000000, v{SUM}')
    A(f'v_mul_f32 v{SQ}, 0x3b000000, v{SQ}')
    A(f'v_fma_f32 v{SQ}, -v{SUM}, v{SUM}, v{SQ}')
    A(f'v_max_f32 v{SQ}, 0, v{SQ}')
    A(f'v_cvt_pk_bf16_f32 v{T}, v{SQ}, v{SQ}')
    A(f'v_lshlrev_b32 v{T}, 16, v{T}')
    A(f'v_add_f32 v{T}, 0x3727c5ac, v{T}')
    A(f'v_cvt_pk_bf16_f32 v{T}, v{T}, v{T}')
    A(f'v_lshlrev_b32 v{T}, 16, v{T}')
    A(f'v_sqrt_f32 v{T}, v{T}')
    A(f'v_cvt_pk_bf16_f32 v{T}, v{T}, v{SUM}')

def j1_process(A, D, T, S_TAG, flags=''):
    A('s_mov_b32 s6, 0x3f803f80')
    for r in range(2):
        for j in range(4):
            d = D + 4*r + j
            A(f'v_dot2_f32_bf16 v{T+r}, v{d}, s6, {"0" if j == 0 else v(T+r)}')
            A(f'v_dot2_f32_bf16 v{T+2+r}, v{d}, v{d}, {"0" if j == 0 else v(T+2+r)}')
    A(f'v_permlane32_swap_b32 v{T}, v{T+1}')
    A(f'v_permlane32_swap_b32 v{T+2}, v{T+3}')
    A(f'v_add_f32 v{T}, v{T}, v{T+1}')
    A(f'v_add_f32 v{T+2}, v{T+2}, v{T+3}')
    A(f'v_permlane16_swap_b32 v{T}, v{T+2}')
    A(f'v_add_f32 v{T}, v{T}, v{T+2}')
    for r in (8, 4, 2, 1):
        A(f'v_add_f32_dpp v{T}, v{T}, v{T} row_ror:{r} {DPPM}')
    A(f'v_mov_b32 v{T+1}, v{T}')
    A(f'v_permlane16_swap_b32 v{T}, v{T+1}')
    finish_stats(A, T, T+1, T+2)
    A(f'v_mov_b32 v{T+3}, s{S_TAG}')
    A(f'v_lshrrev_b32 v{T+4}, 5, v1')
    A(f'v_lshlrev_b32 v{T+4}, 3, v{T+4}')
    A('s_lshl_b32 s4, s2, 6')
    A('s_lshl_b32 s5, s3, 4')
    A('s_add_u32 s4, s4, s5')
    A(f's_add_u32 s4, s4, {WS_STATS1:#x}')
    A('s_mov_b32 exec_lo, 1')
    A('s_mov_b32 exec_hi, 1')
    A(f'buffer_store_dwordx2 {v(T+2,2)}, v{T+4}, {s(SRD_WS,4)}, s4 offen {flags}')
    A('s_mov_b64 exec, -1')

def j2_colgroup(A, sd):
    A(f's_and_b32 s{sd}, s2, 7')
    A(f's_mul_i32 s{sd}, s{sd}, 24')
    A('s_lshr_b32 s5, s2, 3')
    A(f's_add_u32 s{sd}, s{sd}, s5')

def j2_issue(A, D, C, tmp, sd):
    j2_colgroup(A, sd)
    A(f'v_lshrrev_b32 v{tmp}, 1, v0')
    A(f'v_lshlrev_b32 v{tmp+1}, 1, v{tmp}')
    for k in range(4):
        A(f'v_mov_b32 v{C+k}, 0')
    for k in range(4):
        A(f'global_load_short_d16_hi v{C+k}, v{tmp+1}, {s(P_C,2)} offset:{256*k}')
    A(f'v_mul_u32_u24 v{tmp}, 6144, v{tmp}')
    A(f'v_and_b32 v{tmp+1}, 1, v0')
    A(f'v_lshl_add_u32 v{tmp}, v{tmp+1}, 4, v{tmp}')
    A(f's_lshl_b32 s4, s{sd}, 5')
    for k in range(4):
        A(f'buffer_load_dwordx4 {v(D+4*k,4)}, v{tmp}, {s(SRD_WMOD,4)}, s4 offen nt')
        if k < 3: A(f's_add_u32 s4, s4, {128*6144}')

def j2_process(A, D, C, T, sd, S_TAG, lds, flags=''):
    ACC = T; U = T + 8
    for k in range(4):
        A(f'v_mul_f32 v{U+k}, 0xbfb8aa3b, v{C+k}')
    for k in range(4):
        A(f'v_exp_f32 v{U+k}, v{U+k}')
    for k in range(4):
        A(f'v_add_f32 v{U+k}, 1.0, v{U+k}')
    for k in range(4):
        A(f'v_rcp_f32 v{U+k}, v{U+k}')
    for k in range(4):
        A(f'v_mul_f32 v{C+k}, v{C+k}, v{U+k}')
    for k in range(0, 4, 2):
        A(f'v_cvt_pk_bf16_f32 v{U}, v{C+k}, v{C+k+1}')
        A(f'v_lshlrev_b32 v{C+k}, 16, v{U}')
        A(f'v_and_b32 v{C+k+1}, 0xffff0000, v{U}')
    for k in range(4):
        hi = k & 1; cp = C + (k & ~1)
        for j in range(4):
            u = U + 2*(j & 1)
            A(f'v_lshlrev_b32 v{u}, 16, v{D+4*k+j}')
            A(f'v_and_b32 v{u+1}, 0xffff0000, v{D+4*k+j}')
            if k == 0:
                A(f'v_pk_mul_f32 {v(ACC+2*j,2)}, {v(u,2)}, {v(cp,2)} op_sel:[0,{hi}] op_sel_hi:[1,{hi}]')
            else:
                A(f'v_pk_fma_f32 {v(ACC+2*j,2)}, {v(u,2)}, {v(cp,2)}, {v(ACC+2*j,2)} op_sel:[0,{hi},0] op_sel_hi:[1,{hi},1]')
    for j in range(4):
        A(f'v_permlane32_swap_b32 v{ACC+j}, v{ACC+j+4}')
    for j in range(4):
        A(f'v_add_f32 v{ACC+j}, v{ACC+j}, v{ACC+j+4}')
    for j in range(2):
        A(f'v_permlane16_swap_b32 v{ACC+j}, v{ACC+j+2}')
    for j in range(2):
        A(f'v_add_f32 v{ACC+j}, v{ACC+j}, v{ACC+j+2}')
    for m in ('row_ror:8', 'row_ror:4', 'quad_perm:[2,3,0,1]'):
        for j in range(2):
            A(f'v_add_f32_dpp v{ACC+j}, v{ACC+j}, v{ACC+j} {m} {DPPM}')
    A(f'v_lshrrev_b32 v{U}, 4, v1')
    A(f'v_and_b32 v{U+1}, 1, v1')
    A(f'v_lshl_add_u32 v{U}, v{U+1}, 2, v{U}')
    A(f'v_lshlrev_b32 v{U}, 3, v{U}')
    A(f's_lshl_b32 s4, s3, 6')
    A(f'v_add_u32 v{U}, s4, v{U}')
    A(f'ds_write_b64 v{U}, {v(ACC,2)} offset:{lds}')
    A('s_waitcnt lgkmcnt(0)')
    A('s_barrier')
    A(f'v_and_b32 v{U}, 7, v1')
    A(f'v_lshlrev_b32 v{U+1}, 3, v{U}')
    for w in range(4):
        A(f'ds_read_b64 {v(ACC+2*w,2)}, v{U+1} offset:{lds+64*w}')
    A('s_waitcnt lgkmcnt(0)')
    A(f'v_pk_add_f32 {v(ACC,2)}, {v(ACC,2)}, {v(ACC+2,2)}')
    A(f'v_pk_add_f32 {v(ACC+4,2)}, {v(ACC+4,2)}, {v(ACC+6,2)}')
    A(f'v_pk_add_f32 {v(ACC,2)}, {v(ACC,2)}, {v(ACC+4,2)}')
    A(f'v_cvt_pk_bf16_f32 v{ACC}, v{ACC}, v{ACC+1}')
    A(f's_lshr_b32 s4, s{sd}, 5')
    A('s_cmp_eq_u32 s4, 1')
    A('s_cselect_b32 s5, 1.0, 0')
    A('s_cmp_eq_u32 s4, 4')
    A('s_cselect_b32 s5, 1.0, s5')
    A(f'v_lshlrev_b32 v{ACC+2}, 16, v{ACC}')
    A(f'v_and_b32 v{ACC+3}, 0xffff0000, v{ACC}')
    A(f'v_add_f32 v{ACC+2}, s5, v{ACC+2}')
    A(f'v_add_f32 v{ACC+3}, s5, v{ACC+3}')
    A(f'v_cvt_pk_bf16_f32 v{ACC}, v{ACC+2}, v{ACC+3}')
    A(f'v_mov_b32 v{ACC+1}, s{S_TAG}')
    A(f'v_lshlrev_b32 v{U}, 2, v{U}')
    A(f's_lshl_b32 s4, s{sd}, 6')
    A(f's_add_u32 s4, s4, {WS_MODG:#x}')
    A(f's_lshl_b32 s5, s{sd}, 5')
    A(f's_add_u32 s5, s5, {WS_MODP:#x}')
    A('s_cmp_lg_u32 s3, 0')
    A('s_cbranch_scc1 L_j2_done')
    A('s_mov_b64 exec, 0xff')
    A(f'buffer_store_dwordx2 {v(ACC,2)}, v{U+1}, {s(SRD_WS,4)}, s4 offen {flags}')
    A(f'buffer_store_dword v{ACC}, v{U}, {s(SRD_WS,4)}, s5 offen {flags}')
    A('s_mov_b64 exec, -1')
    A.label('L_j2_done')

def j3_w1_issue(A, D, T, st):
    A(f'v_and_b32 v{T}, 15, v1')
    A(f'v_lshrrev_b32 v{T+1}, 2, v{T}')
    A(f'v_and_b32 v{T+2}, 1, v{T}')
    A(f'v_lshl_add_u32 v{T+1}, v{T+1}, 1, v{T+2}')
    A(f'v_lshlrev_b32 v{T+1}, 4, v{T+1}')
    A(f'v_lshrrev_b32 v{T+2}, 4, v1')
    A(f'v_mul_u32_u24 v{T+2}, {8*3584}, v{T+2}')
    A(f'v_add_u32 v{T+1}, v{T+1}, v{T+2}')
    A(f's_and_b32 s4, s{st}, 15')
    A(f's_mul_i32 s4, s4, {32*3584}')
    A(f's_lshr_b32 s5, s{st}, 4')
    A('s_lshl_b32 s5, s5, 7')
    A('s_add_u32 s4, s4, s5')
    A(f's_add_u32 s4, s4, 3584')
    A(f'v_add_u32 v{T+1}, s4, v{T+1}')
    A(f'v_and_b32 v{T}, 2, v{T}')
    A(f'v_cmp_eq_u32 vcc, 0, v{T}')
    A(f'v_mov_b32 v{T+2}, s{P_WU}')
    A(f'v_mov_b32 v{T+3}, s{P_WU+1}')
    A(f'v_mov_b32 v{T+4}, s{P_WG}')
    A(f'v_mov_b32 v{T+5}, s{P_WG+1}')
    A(f'v_cndmask_b32 v{T+2}, v{T+2}, v{T+4}, vcc')
    A(f'v_cndmask_b32 v{T+3}, v{T+3}, v{T+5}, vcc')
    A(f'v_add_co_u32 v{T+2}, vcc, v{T+2}, v{T+1}')
    A(f'v_addc_co_u32 v{T+3}, vcc, 0, v{T+3}, vcc')
    A(f's_mov_b32 s4, {3*3584}')
    A('s_mov_b32 s5, 0')
    for e in range(8):
        off = (e % 3 - 1) * 3584
        A(f'global_load_dwordx4 {v(D+4*e,4)}, {v(T+2,2)}, off offset:{off} nt')
        if e % 3 == 2: A(f'v_lshl_add_u64 {v(T+2,2)}, {v(T+2,2)}, 0, s[4:5]')

def j3_w1_process(A, D, O, T, st, flags=''):
    A('s_mov_b32 s6, 0x05040100')
    A('s_mov_b32 s7, 0x07060302')
    A(f's_lshr_b32 s4, s{st}, 4')
    A('s_lshl_b32 s4, s4, 17')
    A(f's_and_b32 s5, s{st}, 15')
    A('s_lshl_b32 s5, s5, 10')
    A('s_add_u32 s4, s4, s5')
    A(f's_add_u32 s4, s4, {WS_W1F:#x}')
    A(f'v_lshlrev_b32 v{T}, 4, v1')
    for c in range(8):
        o = O + 4*(c & 1)
        for j in range(4):
            A(f'v_perm_b32 v{o+j}, v{D+4*(2*j+1)+c//2}, v{D+4*(2*j)+c//2}, s{6+(c&1)}')
        A(f'buffer_store_dwordx4 {v(o,4)}, v{T}, {s(SRD_WS,4)}, s4 offen {flags}')
        if c < 7: A('s_add_u32 s4, s4, 0x4000')

def j3_w2_issue(A, D, T, st):
    A(f'v_lshrrev_b32 v{T}, 4, v1')
    A(f's_lshr_b32 s4, s{st}, 3')
    A('s_lshl_b32 s4, s4, 2')
    A(f'v_add_u32 v{T}, s4, v{T}')
    A(f'v_lshrrev_b32 v{T+1}, 3, v{T}')
    A(f'v_and_b32 v{T}, 7, v{T}')
    A(f'v_lshl_add_u32 v{T}, v{T+1}, 6, v{T}')
    A(f'v_lshlrev_b32 v{T}, 10, v{T}')
    A(f'v_and_b32 v{T+1}, 15, v1')
    A(f'v_lshl_add_u32 v{T}, v{T+1}, 3, v{T}')
    A(f's_and_b32 s4, s{st}, 7')
    A('s_lshl_b32 s4, s4, 7')
    for e in range(8):
        A(f'buffer_load_dwordx2 {v(D+2*e,2)}, v{T}, {s(SRD_WD,4)}, s4 offen nt')
        if e < 7: A('s_add_u32 s4, s4, 8192')

def j3_w2_process(A, D, O, T, st, flags=''):
    A('s_mov_b32 s6, 0x05040100')
    A('s_mov_b32 s7, 0x07060302')
    A(f's_and_b32 s4, s{st}, 7')
    A(f's_mul_i32 s4, s4, {4*56*1024}')
    A(f's_lshr_b32 s5, s{st}, 3')
    A('s_lshl_b32 s5, s5, 10')
    A('s_add_u32 s4, s4, s5')
    A(f's_add_u32 s4, s4, {WS_W2F:#x}')
    A(f'v_lshlrev_b32 v{T}, 4, v1')
    for c in range(4):
        o = O + 4*(c & 1)
        for j in range(4):
            A(f'v_perm_b32 v{o+j}, v{D+2*(2*j+1)+c//2}, v{D+2*(2*j)+c//2}, s{6+(c&1)}')
        A(f'buffer_store_dwordx4 {v(o,4)}, v{T}, {s(SRD_WS,4)}, s4 offen {flags}')
        if c < 3: A(f's_add_u32 s4, s4, {56*1024}')

def k1(name):
    A = Asm()
    A('s_cmp_ge_u32 s2, 256')
    A('s_cbranch_scc1 L_k1_end')
    A('v_mov_b32 v60, 0') if DIAG else None
    stamp(A, 60, 0)
    kernarg(A)
    setup_ids(A)
    A('s_waitcnt lgkmcnt(0)')
    stamp(A, 60, 1)
    srd(A, SRD_WS, P_WS, WS_END); srd(A, SRD_X, P_X, 2048*1024); srd(A, SRD_WMOD, P_WMOD, 512*6144); srd(A, SRD_WD, P_WD, 1792*1024)
    A('s_mov_b32 s72, 1')
    A('v_mov_b32 v2, 0')
    A('v_lshlrev_b32 v3, 2, v0')
    A('s_lshl_b32 s4, s2, 5')
    A(f's_add_u32 s4, s4, {WS_STATS2:#x}')
    A('s_lshl_b32 s5, s2, 7')
    A(f's_add_u32 s5, s5, {WS_FLAGS:#x}')
    A('s_cmp_lg_u32 s3, 0')
    A('s_cbranch_scc1 L_k1_nz')
    A('s_mov_b64 exec, 0xff')
    A(f'buffer_store_dword v2, v3, {s(SRD_WS,4)}, s4 offen')
    A(f'buffer_store_dword v2, v3, {s(SRD_WS,4)}, s5 offen')
    A('s_mov_b64 exec, -1')
    A.label('L_k1_nz')
    j1_issue(A, 8, 2)
    A('s_waitcnt vmcnt(0)')
    stamp(A, 60, 2)
    j1_process(A, 8, 16, 72)
    stamp(A, 60, 3)
    A('s_cmp_ge_u32 s2, 192')
    A('s_cbranch_scc1 L_k1_j3')
    j2_issue(A, 8, 24, 2, 73)
    A('s_waitcnt vmcnt(0)')
    stamp(A, 60, 4)
    j2_process(A, 8, 24, 28, 73, 72, 0)
    A.label('L_k1_j3')
    stamp(A, 60, 5)
    A('s_cmp_lt_u32 s2, 32')
    A('s_cbranch_scc1 L_k1_fin')
    A('s_sub_u32 s74, s2, 32')
    A('s_lshl_b32 s74, s74, 2')
    A('s_add_u32 s74, s74, s3')
    A('s_cmp_ge_u32 s74, 448')
    A('s_cbranch_scc1 L_k1_w2')
    j3_w1_issue(A, 8, 2, 74)
    A('s_waitcnt vmcnt(0)')
    stamp(A, 60, 6)
    j3_w1_process(A, 8, 40, 2, 74)
    A('s_branch L_k1_fin')
    A.label('L_k1_w2')
    A('s_sub_u32 s74, s74, 448')
    j3_w2_issue(A, 8, 2, 74)
    A('s_waitcnt vmcnt(0)')
    stamp(A, 60, 6)
    j3_w2_process(A, 8, 40, 2, 74)
    A.label('L_k1_fin')
    stamp(A, 60, 7)
    stamp_flush(A, 60, 0, 2)
    A.label('L_k1_end')
    A('s_endpgm')
    return kernel_head(name) + A.finish(), kernel_desc(name, 64, 64)
```

```python
import sys
sys.path.insert(0, 'gen')
from common import *
import jobs1, conv, gemm
def empty(name):
    return kernel_head(name) + '    s_endpgm\n', kernel_desc(name, 8, 8)
hdr = open('cdna_kernels/' + NAME + '.s.ref').read().split('; Override launch')[0]
ks = [('prep_kernel', jobs1.k1, 1024), ('conv_kernel', conv.k2, conv.L_END), ('gemm1_kernel', gemm.k3, gemm.G1_END), ('gemm2_kernel', gemm.k4, gemm.G2_END), ('nop_kernel', empty, 0)]
order = sys.argv[2]
out = hdr
for ch in order:
    n, f, lds = ks[int(ch)]
    out += f'; @launch kernel={n} grid=(256,1,1) block=(256,1,1) lds={lds}\n'
out += '.amdgcn_target "amdgcn-amd-amdhsa--gfx950"\n.text\n'
descs = ''
for i, (n, f, lds) in enumerate(ks):
    if str(i) in order:
        t, d = f(n); out += t; descs += d
out += '.section .rodata,"a"\n' + descs
open(sys.argv[1], 'w').write(out)
```

```python
import sys, struct
sys.path.insert(0, 'gen')
from common import *
import jobs1
from jobs1 import finish_stats
from gemm import Tracker

def f32hex(x): return '0x%08x' % struct.unpack('<I', struct.pack('<f', x))[0]

WS_ST2G = 0x1000
WS_XZ = 0x1140000
WS_END2 = WS_XZ + 256 * 32768
F_REP, F_X1, F_HH = 0, 16, 32
SPIN = 0x20000

PITCH = 544
L_KC = 0; KCCH = 2112
L_RT = L_KC + 2 * KCCH; RTCH = 8320; R1OFF = 4160
L_UT = L_RT + 2 * RTCH; UTCH = 4608
L_XT = L_UT + 2 * UTCH
L_RED = 0
L_W1 = 40960
L_WV = L_W1; WVCH = 64 * PITCH
L_CB = L_W1 + 114688
L_VV = L_CB + 2048
L_SCR = L_VV + 1024
L_END = L_SCR + 768
L_G2 = L_W1
assert L_XT + 8192 <= L_W1 and L_END <= 163840

S_TAG = 72; S_J2 = 73; S_J3 = 74; S_PAIR = 75
S_RB, S_CBK, S_ROT, S_ROW4 = 76, 77, 78, 79
S_R64, S_NB, S_K0 = 89, 90, 91
S_SPIN = 12

V_SA, V_CA, V_GA = 2, 4, 6
V_PAR = 8; V_DT = 15
V_Q = 16
V_DK = 48; V_DIAG = 49
V_EA = 50
V_T = 60
V_A = 64; V_ACC = 96; V_B = 128
V_MODR = 224; V_CB = 232; V_DKF = 234
P_AD, P_AW, P_AV, P_WA, P_WB, P_WC = 236, 237, 238, 239, 240, 241
P_AA = 242; P_BA = 246; P_RW = 247; P_RR = 248; P_HA = 249; P_XA = 250; P_L16 = 251; P_T16 = 252; P_UW = 253; P_XW = 254; P_FL = 255

def st(A, k): stamp(A, V_DIAG, k)

def spin_check(A, lab_ok):
    A(f's_sub_u32 s{S_SPIN}, s{S_SPIN}, 1')
    A(f's_cbranch_scc1 {lab_ok}')

def ids(A):
    A('v_and_b32 v1, 63, v0')
    A('v_lshrrev_b32 v2, 6, v0')
    A('v_readfirstlane_b32 s3, v2')
    A('s_and_b32 s4, s2, 7')
    A('s_lshr_b32 s5, s2, 3')
    A(f's_lshl_b32 s{S_PAIR}, s4, 5')
    A(f's_add_u32 s{S_PAIR}, s{S_PAIR}, s5')

def j1_issue(A, VM):
    T = V_T
    A(f'v_and_b32 v{T}, 7, v1')
    A(f'v_lshlrev_b32 v{T}, 10, v{T}')
    A(f'v_lshrrev_b32 v{T+1}, 3, v1')
    A(f'v_lshl_add_u32 v{T}, v{T+1}, 2, v{T}')
    A('s_lshl_b32 s4, s2, 13')
    A('s_lshl_b32 s5, s3, 8')
    A('s_add_u32 s4, s4, s5')
    for k in range(8):
        VM.issue(f'buffer_load_dword v{V_Q+4*k+2}, v{T}, {s(SRD_X,4)}, s4 offen offset:{32*k}', 'j1')

def j1_process(A, VM):
    S = V_A; U = V_A + 8
    A('s_mov_b32 s6, 0x3f803f80')
    for k in range(8):
        x = V_Q + 4*k + 2; h = k & 1
        A(f'v_dot2_f32_bf16 v{S+h}, v{x}, s6, {"0" if k < 2 else v(S+h)}')
        A(f'v_dot2_f32_bf16 v{S+2+h}, v{x}, v{x}, {"0" if k < 2 else v(S+2+h)}')
    A(f'v_add_f32 v{S}, v{S}, v{S+1}')
    A(f'v_add_f32 v{S+2}, v{S+2}, v{S+3}')
    A(f'v_permlane32_swap_b32 v{S}, v{S+2}')
    A(f'v_add_f32 v{S}, v{S}, v{S+2}')
    A(f'v_mov_b32 v{S+1}, v{S}')
    A(f'v_permlane16_swap_b32 v{S}, v{S+1}')
    A(f'v_add_f32 v{S}, v{S}, v{S+1}')
    A(f'v_add_f32_dpp v{S}, v{S}, v{S} row_ror:8 {DPPM}')
    A(f'ds_write_b32 v{U}, v{S}')
    for k in range(8):
        A(f'v_lshlrev_b32 v{V_ACC+2*k}, 16, v{V_Q+4*k+2}') if False else None
    A('s_waitcnt lgkmcnt(0)')
    A('s_barrier')
    for w in range(4): A(f'ds_read2_b32 {v(S+2*w,2)}, v{U+1} offset0:{16*w} offset1:{16*w+8}')
    X = V_A + 12
    for k in range(8):
        A(f'v_lshlrev_b32 v{X+2*k}, 16, v{V_Q+4*k+2}')
        A(f'v_and_b32 v{X+2*k+1}, 0xffff0000, v{V_Q+4*k+2}')
    A('s_waitcnt lgkmcnt(0)')
    A(f'v_pk_add_f32 {v(S,2)}, {v(S,2)}, {v(S+2,2)}')
    A(f'v_pk_add_f32 {v(S+4,2)}, {v(S+4,2)}, {v(S+6,2)}')
    A(f'v_pk_add_f32 {v(S,2)}, {v(S,2)}, {v(S+4,2)}')
    finish_stats(A, S, S+1, S+2)
    A(f'v_lshlrev_b32 v{S}, 16, v{S+2}')
    A(f'v_rcp_f32 v{S}, v{S}')
    A(f'v_and_b32 v{S+1}, 0xffff0000, v{S+2}')
    for k in range(8):
        A(f'v_pk_add_f32 {v(X+2*k,2)}, {v(X+2*k,2)}, {v(S,2)} op_sel:[0,1] op_sel_hi:[1,1] neg_lo:[0,1] neg_hi:[0,1]')
    for k in range(8):
        A(f'v_pk_mul_f32 {v(X+2*k,2)}, {v(X+2*k,2)}, {v(S,2)} op_sel:[0,0] op_sel_hi:[1,0]')
    A('s_lshl_b32 s4, s3, 21')
    A('s_lshl_b32 s5, s2, 7')
    A('s_add_u32 s4, s4, s5')
    A(f's_add_u32 s4, s4, {WS_XZ:#x}')
    for k in range(8):
        A(f'v_cvt_pk_bf16_f32 v{V_Q+4*k}, v{X+2*k}, v{X+2*k+1}')
        VM.issue(f'buffer_store_dwordx4 {v(V_Q+4*k,4)}, v{U+2}, {s(SRD_WS,4)}, s4 offen sc1')
        if k < 7: A('s_add_u32 s4, s4, 0x40000')

def params_issue(A, VM):
    for k in range(7): A(f'v_mov_b32 v{V_PAR+k}, 0')
    A(f's_lshl_b32 s4, s{S_PAIR}, 9')
    A(f'v_lshl_add_u32 v{V_T+2}, v0, 1, s4')
    for k, p in enumerate((P_ARE, P_AIM, P_BRE, P_BIM, P_CRE, P_CIM)):
        VM.issue(f'global_load_short_d16_hi v{V_PAR+k}, v{V_T+2}, {s(p,2)}')
    A(f's_lshl_b32 s4, s{S_PAIR}, 2')
    A(f'v_lshrrev_b32 v{V_T+3}, 7, v0')
    A(f'v_lshl_add_u32 v{V_T+3}, v{V_T+3}, 1, s4')
    VM.issue(f'global_load_short_d16_hi v{V_PAR+6}, v{V_T+3}, {s(P_LDT,2)}')
    A(f'v_mov_b32 v{V_T+3}, s4')
    VM.issue(f'global_load_dword v{V_DK}, v{V_T+3}, {s(P_DSK,2)}', 'par')

J2D, J2C, J2T = 128, 144, 148
def j2_issue(A, VM):
    A('s_sub_u32 s4, s2, 64')
    A('s_cmp_ge_u32 s2, 192')
    A('s_cselect_b32 s4, s4, s2')
    A(f's_and_b32 s{S_J2}, s4, 7')
    A(f's_mul_i32 s{S_J2}, s{S_J2}, 24')
    A('s_lshr_b32 s4, s4, 3')
    A(f's_add_u32 s{S_J2}, s{S_J2}, s4')
    t = V_T
    A(f'v_lshrrev_b32 v{t}, 1, v0')
    A(f'v_lshlrev_b32 v{t+1}, 1, v{t}')
    for k in range(4): A(f'v_mov_b32 v{J2C+k}, 0')
    for k in range(4): VM.issue(f'global_load_short_d16_hi v{J2C+k}, v{t+1}, {s(P_C,2)} offset:{256*k}', 'j2c')
    A(f'v_mul_u32_u24 v{t}, 6144, v{t}')
    A(f'v_and_b32 v{t+1}, 1, v0')
    A(f'v_lshl_add_u32 v{t}, v{t+1}, 4, v{t}')
    A(f's_lshl_b32 s4, s{S_J2}, 5')
    for k in range(4):
        VM.issue(f'buffer_load_dwordx4 {v(J2D+4*k,4)}, v{t}, {s(SRD_WMOD,4)}, s4 offen nt', 'j2')
        if k < 3: A(f's_add_u32 s4, s4, {128*6144}')

J3D = V_ACC
class Quiet:
    def __init__(self, A, VM, key): self.A = A; self.VM = VM; self.key = key
    def __call__(self, t):
        if t.startswith('buffer_') or t.startswith('global_'): self.VM.issue(t, self.key)
        else: self.A(t)
    def label(self, n): self.A.label(n)

def j3_task(A):
    A(f's_lshl_b32 s{S_J3}, s2, 2')
    A(f's_add_u32 s{S_J3}, s{S_J3}, s3')
    A(f's_sub_u32 s4, s{S_J3}, 896')
    A(f's_cmp_ge_u32 s{S_J3}, 896')
    A(f's_cselect_b32 s{S_J3}, s4, s{S_J3}')

def j3_issue(A, VM):
    j3_task(A)
    A(f's_cmp_ge_u32 s{S_J3}, 448')
    A('s_cbranch_scc1 L_j3i_w2')
    jobs1.j3_w1_issue(Quiet(A, VM, 'j3'), J3D, V_A, S_J3)
    A('s_branch L_j3i_done')
    A.label('L_j3i_w2')
    A(f's_sub_u32 s13, s{S_J3}, 448')
    jobs1.j3_w2_issue(A, J3D, V_A, 13)
    A.label('L_j3i_done')

def j3_process(A, VM):
    A('s_mov_b32 s6, 0x05040100')
    A('s_mov_b32 s7, 0x07060302')
    O = (V_T, 92)
    A(f's_cmp_ge_u32 s{S_J3}, 448')
    A('s_cbranch_scc1 L_j3p_w2')
    A(f's_lshr_b32 s4, s{S_J3}, 4')
    A('s_lshl_b32 s4, s4, 17')
    A(f's_and_b32 s5, s{S_J3}, 15')
    A('s_lshl_b32 s5, s5, 10')
    A('s_add_u32 s4, s4, s5')
    A(f's_add_u32 s4, s4, {WS_W1F:#x}')
    for c in range(8):
        o = O[c & 1]
        for j in range(4): A(f'v_perm_b32 v{o+j}, v{J3D+4*(2*j+1)+c//2}, v{J3D+4*(2*j)+c//2}, s{6+(c&1)}')
        A(f'buffer_store_dwordx4 {v(o,4)}, v{P_L16}, {s(SRD_WS,4)}, s4 offen sc1')
        if c < 7: A('s_add_u32 s4, s4, 0x4000')
    A('s_branch L_j3p_done')
    A.label('L_j3p_w2')
    A('s_and_b32 s4, s13, 7')
    A(f's_mul_i32 s4, s4, {4*56*1024}')
    A('s_lshr_b32 s5, s13, 3')
    A('s_lshl_b32 s5, s5, 10')
    A('s_add_u32 s4, s4, s5')
    A(f's_add_u32 s4, s4, {WS_W2F:#x}')
    for c in range(4):
        o = O[c & 1]
        for j in range(4): A(f'v_perm_b32 v{o+j}, v{J3D+2*(2*j+1)+c//2}, v{J3D+2*(2*j)+c//2}, s{6+(c&1)}')
        VM.issue(f'buffer_store_dwordx4 {v(o,4)}, v{P_L16}, {s(SRD_WS,4)}, s4 offen sc1', 'j3st')
        if c < 3: A(f's_add_u32 s4, s4, {56*1024}')
    A.label('L_j3p_done')
    A('s_nop 1')

def precompute(A):
    T = 160
    for k in range(4): A(f'v_mov_b32 v{T+k}, 0')
    A(f'v_lshlrev_b32 v{P_L16}, 4, v1')
    A(f'v_lshlrev_b32 v{P_T16}, 4, v0')
    A('s_mov_b64 exec, 0x3fffffff')
    A(f'ds_write_b128 v{P_L16}, {v(T,4)} offset:{L_UT}')
    A(f'ds_write_b128 v{P_L16}, {v(T,4)} offset:{L_UT+UTCH}')
    A('s_mov_b64 exec, 3')
    for ch in range(2):
        A(f'ds_write_b128 v{P_L16}, {v(T,4)} offset:{L_RT+ch*RTCH+4096}')
        A(f'ds_write_b128 v{P_L16}, {v(T,4)} offset:{L_RT+ch*RTCH+R1OFF+4096}')
        A(f'ds_write_b128 v{P_L16}, {v(T,4)} offset:{L_KC+ch*KCCH+2048}')
    A('s_mov_b64 exec, -1')
    U = V_A + 8
    A(f'v_and_b32 v{T}, 7, v1')
    A(f'v_lshlrev_b32 v{U+1}, 2, v{T}')
    A(f'v_add_u32 v{U+1}, {L_SCR}, v{U+1}')
    A(f'v_and_b32 v{T+1}, 32, v1')
    A('s_lshl_b32 s4, s3, 6')
    A(f'v_add3_u32 v{U}, v{U+1}, v{T+1}, s4')
    A(f'v_lshrrev_b32 v{T+1}, 3, v1')
    A(f'v_lshlrev_b32 v{T+1}, 15, v{T+1}')
    A(f'v_lshl_add_u32 v{U+2}, v{T}, 4, v{T+1}')
    L0 = T + 4; F = T + 6; PK = T + 16; LL = T + 22
    A(f'v_lshlrev_b32 v{L0}, 3, v0')
    A(f'v_sub_u32 v{L0}, 2047, v{L0}')
    A(f'v_cvt_f32_i32 v{F}, v{L0}')
    for e in range(1, 10): A(f'v_add_f32 v{F+e}, {f32hex(-float(e))}, v{F}')
    for e in range(0, 10, 2): A(f'v_cvt_pk_bf16_f32 v{PK+e//2}, v{F+e}, v{F+e+1}')
    A(f's_movk_i32 s4, {128+0x4280:#x}')
    A(f's_mov_b32 s5, {(L_KC - 2*0x4280) & 0xffffffff:#x}')
    for e in range(9):
        if e & 1: A(f'v_lshrrev_b32 v{V_EA+e}, 16, v{PK+e//2}')
        else: A(f'v_and_b32 v{V_EA+e}, 0xffff, v{PK+e//2}')
        A(f'v_add_u32 v{LL+(e&1)}, {0x4280-e:#x}, v{L0}')
        A(f'v_med3_i32 v{V_EA+e}, v{V_EA+e}, v{LL+(e&1)}, s4')
        A(f'v_lshl_add_u32 v{V_EA+e}, v{V_EA+e}, 1, s5')
    A(f'v_mov_b32 v{LL}, {L_KC+2048}')
    A('v_cmp_eq_u32 vcc, 0xff, v0')
    A(f'v_cndmask_b32 v{V_EA+8}, v{V_EA+8}, v{LL}, vcc')
    A(f'v_lshrrev_b32 v{P_AD}, 7, v0')
    A(f'v_mul_u32_u24 v{P_AD}, {WVCH}, v{P_AD}')
    A(f'v_and_b32 v{T}, 127, v0')
    A(f'v_lshl_add_u32 v{P_AD}, v{T}, 2, v{P_AD}')
    A(f'v_add_u32 v{P_AD}, {L_WV}, v{P_AD}')
    I, Q = T, T + 1
    A(f'v_and_b32 v{I}, 15, v1')
    A(f'v_lshrrev_b32 v{Q}, 4, v1')
    A(f'v_mul_u32_u24 v{P_AW}, {PITCH}, v{I}')
    A(f'v_lshl_add_u32 v{P_AW}, v{Q}, 4, v{P_AW}')
    A('s_lshr_b32 s8, s3, 1')
    A('s_and_b32 s9, s3, 1')
    A(f's_mul_i32 s4, s8, {WVCH}')
    A(f's_add_u32 s4, s4, {L_WV}')
    A(f'v_add_u32 v{P_AW}, s4, v{P_AW}')
    A(f's_mul_i32 s5, s9, {16*PITCH}')
    A(f'v_add_u32 v{P_AV}, s5, v{P_AW}')
    AQ = T + 2; X = T + 3
    A('s_lshl_b32 s5, s9, 4')
    A(f'v_add_u32 v{AQ}, s5, v{I}')
    A(f's_mul_i32 s4, s8, {KCCH}')
    A(f'v_lshlrev_b32 v{P_WA}, 4, v{AQ}')
    A(f'v_add_u32 v{X}, 8, v{P_WA}')
    A(f'v_cmp_eq_u32 vcc, 1, v{Q}')
    A(f'v_lshlrev_b32 v{X+1}, 3, v{AQ}')
    A(f'v_add_u32 v{X+1}, 512, v{X+1}')
    A(f'v_cndmask_b32 v{P_WA}, v{P_WA}, v{X}, vcc')
    A(f'v_cmp_eq_u32 vcc, 2, v{Q}')
    A(f'v_lshlrev_b32 v{X}, 2, v{AQ}')
    A(f'v_add_u32 v{X}, 768, v{X}')
    A(f'v_cndmask_b32 v{P_WA}, v{P_WA}, v{X+1}, vcc')
    A(f'v_cmp_eq_u32 vcc, 3, v{Q}')
    A(f'v_mov_b32 v{X+1}, 4')
    A(f'v_mov_b32 v{X+2}, 128')
    A(f'v_cndmask_b32 v{P_WA}, v{P_WA}, v{X}, vcc')
    A(f'v_cndmask_b32 v{X+1}, v{X+1}, v{X+2}, vcc')
    A(f'v_add_u32 v{P_WA}, s4, v{P_WA}')
    A(f'v_add_u32 v{P_WB}, v{P_WA}, v{X+1}')
    A(f'v_lshlrev_b32 v{P_WC}, 8, v{Q}')
    A(f'v_lshl_add_u32 v{P_WC}, v{AQ}, 1, v{P_WC}')
    A(f'v_add_u32 v{P_WC}, s4, v{P_WC}')
    A(f'v_lshlrev_b32 v{X}, 3, v{Q}')
    A(f'v_sub_u32 v{X}, v{X}, v{I}')
    A(f'v_add_u32 v{X}, 2031, v{X}')
    A(f'v_and_b32 v{X+1}, 1, v{X}')
    A(f'v_mul_u32_u24 v{X+1}, {R1OFF}, v{X+1}')
    A(f'v_lshrrev_b32 v{X}, 1, v{X}')
    A(f'v_lshl_add_u32 v{X}, v{X}, 2, v{X+1}')
    A(f's_mul_i32 s5, s8, {RTCH}')
    A('s_lshl_b32 s6, s9, 6')
    A('s_sub_u32 s5, s5, s6')
    A(f's_add_u32 s5, s5, {L_RT - 128*7}')
    for g in range(4):
        A(f'v_add_u32 v{P_AA+g}, s5, v{X}')
        if g < 3: A('s_sub_u32 s5, s5, 1024')
    A(f's_mul_i32 s5, s8, {UTCH}')
    A('s_sub_u32 s5, s5, s6')
    A(f's_add_u32 s5, s5, {L_UT + 64}')
    A(f'v_lshlrev_b32 v{P_BA}, 5, v{I}')
    A(f'v_lshl_add_u32 v{P_BA}, v{Q}, 4, v{P_BA}')
    A(f'v_add_u32 v{P_BA}, s5, v{P_BA}')
    A(f'v_mul_u32_u24 v{X}, 320, v{Q}')
    A(f'v_lshl_add_u32 v{P_RW}, v{I}, 4, v{X}')
    A(f's_mul_i32 s4, s3, {8*1280}')
    A(f'v_add_u32 v{P_RW}, s4, v{P_RW}')
    A(f'v_and_b32 v{X}, 3, v1')
    A(f'v_mul_u32_u24 v{X}, 320, v{X}')
    A(f'v_lshrrev_b32 v{X+1}, 2, v1')
    A(f'v_lshl_add_u32 v{P_RR}, v{X+1}, 4, v{X}')
    A(f's_mul_i32 s4, s3, {2*1280}')
    A(f'v_add_u32 v{P_RR}, s4, v{P_RR}')
    A('s_lshl_b32 s4, s3, 10')
    A(f'v_lshl_add_u32 v{P_HA}, v1, 3, s4')
    A(f'v_lshlrev_b32 v{P_XA}, 1, v{P_HA}')
    A(f'v_lshl_add_u32 v{P_UW}, v1, 1, s4')
    A(f'v_lshlrev_b32 v{P_XW}, 1, v{P_UW}')
    A(f'v_lshlrev_b32 v{P_FL}, 7, v1')
    assert L_KC == 0 and L_RED == 0

def kgen_valu(A):
    ARE, AIM, BRE, BIM, CRE, CIM, LDT = [V_PAR + k for k in range(7)]
    AL, BE = V_T, V_T + 1
    A(f'v_mul_f32 v{V_DT}, 0x3fb8aa3b, v{LDT}')
    A(f'v_exp_f32 v{V_DT}, v{V_DT}')
    W = V_B; Vv = V_B + 44
    Z1, Z2, Z4, Z256, Z512, Z1024 = V_A, V_A + 2, V_A + 4, V_A + 6, V_A + 8, V_A + 10
    E = V_A + 12; PKT = V_A + 20
    A(f'v_pk_mul_f32 {v(W,2)}, {v(CRE,2)}, {v(BRE,2)} op_sel:[0,0] op_sel_hi:[1,0]')
    A(f'v_cvt_pk_bf16_f32 v{V_DT}, v{V_DT}, v{V_DT}')
    A(f'v_pk_fma_f32 {v(W,2)}, {v(CRE,2)}, {v(BRE,2)}, {v(W,2)} op_sel:[1,1,0] op_sel_hi:[0,1,1] neg_lo:[1,0,0]')
    A(f'v_lshlrev_b32 v{V_DT}, 16, v{V_DT}')
    A(f'v_mul_f32 v{AL}, v{V_DT}, v{ARE}')
    A(f'v_mul_f32 v{BE}, v{V_DT}, v{AIM}')
    A(f'v_mul_f32 v{AL}, 0x3fb8aa3b, v{AL}')
    A(f'v_mul_f32 v{BE}, 0.15915494, v{BE}')
    tgt = [(Vv + 2, 8.0), (Z1, 1.0), (Z256, 256.0)]
    for i, (d, o) in enumerate(tgt):
        if o != 1.0:
            A(f'v_mul_f32 v{E+i}, {f32hex(o)}, v{AL}')
            A(f'v_mul_f32 v{E+3+i}, {f32hex(o)}, v{BE}')
    for i, (d, o) in enumerate(tgt):
        A(f'v_fract_f32 v{E+3+i}, v{BE if o == 1.0 else E+3+i}')
        A(f'v_exp_f32 v{E+i}, v{AL if o == 1.0 else E+i}')
    for i, (d, o) in enumerate(tgt):
        A(f'v_cos_f32 v{d}, v{E+3+i}')
        A(f'v_sin_f32 v{d+1}, v{E+3+i}')
    for i, (d, o) in enumerate(tgt):
        ep = (E + i) & ~1; hi = (E + i) & 1
        A(f'v_pk_mul_f32 {v(d,2)}, {v(d,2)}, {v(ep,2)} op_sel:[0,{hi}] op_sel_hi:[1,{hi}]')
    cnt = [0]
    def row_out(row, reg, conj):
        t = PKT + (cnt[0] % 8); cnt[0] += 1
        return [f'v_cvt_pk_bf16_f32 v{t}, v{reg}, {"-" if conj else ""}v{reg+1}', f'ds_write_b32 v{P_AD}, v{t} offset:{row*PITCH}']
    w = lambda r: W + 2*r
    vv = lambda r: Vv + 2*r
    G = []
    G.append([(vv(2), vv(1), vv(1), 34, 1), (Z2, Z1, Z1, None, 0), (Z512, Z256, Z256, None, 0), (w(1), w(0), Z1, 1, 0), (w(8), w(0), Z256, 8, 0)])
    G.append([(vv(4), vv(2), vv(2), 36, 1), (Z4, Z2, Z2, None, 0), (Z1024, Z512, Z512, None, 0), (vv(3), vv(2), vv(1), 35, 1), (w(2), w(0), Z2, 2, 0), (w(3), w(1), Z2, 3, 0), (w(12), w(0), Z512, 12, 0), (w(14), w(8), Z512, 14, 0)])
    G.append([(vv(8), vv(4), vv(4), 40, 1)] + [(w(4+i), w(i), Z4, 4+i, 0) for i in range(4)] + [(vv(4+i), vv(4), vv(i), 36+i, 1) for i in range(1, 4)])
    G.append([(w(9), w(2), Z256, 9, 0), (w(16), w(0), Z1024, 16, 0), (w(17), w(8), Z1024, 17, 0), (w(18), w(12), Z1024, 18, 0), (w(19), w(14), Z1024, 19, 0), (vv(16), vv(8), vv(8), 48, 1)])
    G.append([(w(10), w(4), Z256, 10, 0), (w(11), w(6), Z256, 11, 0), (w(13), w(4), Z512, 13, 0)] + [(vv(8+i), vv(8), vv(i), 40+i, 1) for i in range(1, 8)])
    G.append([(w(15), w(10), Z512, 15, 0), (w(20), w(16), Z1024, 20, 0)] + [(vv(16+i), vv(16), vv(i), 48+i, 1) for i in range(1, 16)])
    flat = []
    A(f'v_mov_b32 v{E}, 0x3f80')
    pend = [f'ds_write_b32 v{P_AD}, v{E} offset:{32*PITCH}'] + row_out(0, w(0), 0) + row_out(33, vv(1), 1)
    nrows = 3
    for grp in G:
        for c0 in range(0, len(grp), 3):
            ch = grp[c0:c0+3]
            for (d, x, y, row, cj) in ch: A(f'v_pk_mul_f32 {v(d,2)}, {v(x,2)}, {v(y,2)} op_sel:[0,0] op_sel_hi:[1,0]')
            for (d, x, y, row, cj) in ch: A(f'v_pk_fma_f32 {v(d,2)}, {v(x,2)}, {v(y,2)}, {v(d,2)} op_sel:[1,1,0] op_sel_hi:[0,1,1] neg_lo:[1,0,0]')
            cv = [p for p in pend if p.startswith('v_')]; wr = [p for p in pend if p.startswith('ds_')]
            for p in cv + wr: A(p)
            pend = []
            for (d, x, y, row, cj) in ch:
                if row is not None: pend += row_out(row, d, cj); nrows += 1
    cv = [p for p in pend if p.startswith('v_')]; wr = [p for p in pend if p.startswith('ds_')]
    for p in cv + wr: A(p)
    assert nrows == 53

def kgen_mfma(A):
    F = V_B
    order = []
    for k in range(8):
        order += [(F + 12*k, P_AV, 32*PITCH + 64*k), (F + 12*k + 4, P_AW, 64*k), (F + 12*k + 8, P_AW, 16*PITCH + 64*k)]
    for i in range(15): A(f'ds_read_b128 {v(order[i][0],4)}, v{order[i][1]} offset:{order[i][2]}')
    nxt = 15
    K = V_A
    for k in range(8):
        A(f's_waitcnt lgkmcnt({nxt - 3*(k+1)})')
        c0 = '0' if k == 0 else v(K,4); c1 = '0' if k == 0 else v(K+4,4)
        A(f'v_mfma_f32_16x16x32_bf16 {v(K,4)}, {v(F+12*k+4,4)}, {v(F+12*k,4)}, {c0}')
        A(f'v_mfma_f32_16x16x32_bf16 {v(K+4,4)}, {v(F+12*k+8,4)}, {v(F+12*k,4)}, {c1}')
        for _ in range(3):
            if nxt < 24:
                A(f'ds_read_b128 {v(order[nxt][0],4)}, v{order[nxt][1]} offset:{order[nxt][2]}'); nxt += 1
    dp = V_DT & ~1; hi = V_DT & 1
    for j in range(4): A(f'v_pk_mul_f32 {v(K+2*j,2)}, {v(K+2*j,2)}, {v(dp,2)} op_sel:[0,{hi}] op_sel_hi:[1,{hi}]')
    for j in range(4): A(f'v_cvt_pk_bf16_f32 v{K+8+j}, v{K+2*j}, v{K+2*j+1}')
    A(f'ds_write_b32 v{P_WA}, v{K+8}')
    A(f'ds_write_b32 v{P_WB}, v{K+9}')
    A(f'ds_write_b16 v{P_WC}, v{K+10} offset:1024')
    A(f'ds_write_b16_d16_hi v{P_WC}, v{K+10} offset:{1024+64}')
    A(f'ds_write_b16 v{P_WC}, v{K+11} offset:{1024+128}')
    A(f'ds_write_b16_d16_hi v{P_WC}, v{K+11} offset:{1024+192}')

def expand(A):
    G = V_B; O = V_B + 32
    for e in range(9): A(f'ds_read_u16 v{G+e}, v{V_EA+e}')
    for e in range(5): A(f'ds_read_u16 v{G+16+e}, v{V_EA+e} offset:{KCCH}')
    A('s_waitcnt lgkmcnt(5)')
    for e in range(5, 9): A(f'ds_read_u16 v{G+16+e}, v{V_EA+e} offset:{KCCH}')
    for ch in range(2):
        g = G + 16*ch; o = O + 8*ch
        for y in range(4):
            A(f'v_lshl_or_b32 v{o+y}, v{g+2*y+1}, 16, v{g+2*y}')
            A(f'v_lshl_or_b32 v{o+4+y}, v{g+2*y+2}, 16, v{g+2*y+1}')
        if ch == 0: A('s_waitcnt lgkmcnt(0)')
        A(f'ds_write_b128 v{P_T16}, {v(o,4)} offset:{L_RT+ch*RTCH}')
        A(f'ds_write_b128 v{P_T16}, {v(o+4,4)} offset:{L_RT+ch*RTCH+R1OFF}')

def sweep_text():
    t = []
    for k in range(8):
        t.append(f'buffer_load_dwordx4 {v(V_Q+4*k,4)}, v{P_L16}, {s(SRD_WS,4)}, s{80 + k//4} offen offset:{1024*(k&3)} sc1')
    for j, seg in enumerate((0, 1, 2, 4)):
        t.append(f'buffer_load_dwordx2 {v(V_MODR+2*j,2)}, off, {s(SRD_WS,4)}, s{82 + seg//2} offset:{2048*(seg&1)} sc1')
    return t

def sweep_issue(A, VM):
    A(f's_lshl_b32 s80, s{S_PAIR}, 15')
    A('s_lshl_b32 s4, s3, 13')
    A('s_add_u32 s80, s80, s4')
    A(f's_add_u32 s80, s80, {WS_XZ:#x}')
    A('s_add_u32 s81, s80, 0x1000')
    A(f's_lshl_b32 s82, s{S_PAIR}, 3')
    A(f's_add_u32 s82, s82, {WS_MODG:#x}')
    A('s_add_u32 s83, s82, 0x1000')
    A('s_add_u32 s84, s82, 0x2000')
    for t in sweep_text(): VM.issue(t, 'sweep')

def sweep_check(A, VM):
    VM.wait('sweep')
    A.label('L_sw_chk')
    tags = [V_Q + 4*k + j for k in range(8) for j in (1, 3)] + [V_MODR + 2*j + 1 for j in range(4)]
    T = V_T
    A(f'v_min3_u32 v{T}, v{tags[0]}, v{tags[1]}, s{S_TAG}')
    A(f'v_max3_u32 v{T+1}, v{tags[0]}, v{tags[1]}, s{S_TAG}')
    for i in range(2, 20, 2):
        A(f'v_min3_u32 v{T}, v{tags[i]}, v{tags[i+1]}, v{T}')
        A(f'v_max3_u32 v{T+1}, v{tags[i]}, v{tags[i+1]}, v{T+1}')
    A(f'v_cmp_ne_u32 vcc, v{T}, v{T+1}')
    A('s_cbranch_vccz L_sw_ok')
    spin_check(A, 'L_sw_ok')
    for t in sweep_text(): A(t)
    A('s_waitcnt vmcnt(0)')
    A('s_branch L_sw_chk')
    A.label('L_sw_ok')

def hbuild(A):
    for d, src in ((V_SA, V_MODR), (V_CA, V_MODR+2), (V_GA, V_MODR+4), (V_CB, V_MODR+6), (V_DKF, V_DK)):
        A(f'v_lshlrev_b32 v{d}, 16, v{src}')
        A(f'v_and_b32 v{d+1}, 0xffff0000, v{src}')
    Z = V_B + 64
    for k in range(8):
        A(f'v_lshlrev_b32 v{Z+2*k}, 16, v{V_Q+4*k}')
        A(f'v_and_b32 v{Z+2*k+1}, 0xffff0000, v{V_Q+4*k}')
        A(f'ds_write_b32 v{P_XW}, v{V_Q+4*k+2} offset:{L_XT+256*k}')
    for k in range(8): A(f'v_pk_fma_f32 {v(Z+2*k,2)}, {v(Z+2*k,2)}, {v(V_CA,2)}, {v(V_SA,2)}')
    A('s_waitcnt lgkmcnt(4)')
    for k in range(8):
        A(f'v_cvt_pk_bf16_f32 v{Z+16+k}, v{Z+2*k}, v{Z+2*k+1}')
        if k == 5: A('s_waitcnt lgkmcnt(4)')
        A(f'ds_write_b16 v{P_UW}, v{Z+16+k} offset:{L_UT+480+128*k}')
        A(f'ds_write_b16_d16_hi v{P_UW}, v{Z+16+k} offset:{L_UT+UTCH+480+128*k}')

def conv_main(A):
    loads = []; seenB = set(); mf = []
    for n in range(32):
        ab = V_A + 4*(n % 8); o = 32*(7 - n % 8)
        loads.append((f'ds_read2_b32 {v(ab,2)}, v{P_AA+n//8} offset0:{o} offset1:{o+1}', ('A', n)))
        loads.append((f'ds_read2_b32 {v(ab+2,2)}, v{P_AA+n//8} offset0:{o+2} offset1:{o+3}', ('A', n)))
        for t in range(n >> 2, 8):
            m = 4*t - n + 3
            if m not in seenB:
                seenB.add(m)
                loads.append((f'ds_read_b128 {a(4*m,4)}, v{P_BA} offset:{128*m}', ('B', m)))
            mf.append((t, n, m))
    last = {}
    for i, (_, k) in enumerate(loads): last[k] = i
    st_ = {'issued': 0, 'done': 0}
    def can_issue(cur_n):
        i = st_['issued']
        if i >= len(loads) or i - st_['done'] >= 15: return False
        k = loads[i][1]
        return not (k[0] == 'A' and k[1] >= cur_n + 8)
    def issue():
        A(loads[st_['issued']][0]); st_['issued'] += 1
    while can_issue(0): issue()
    first = set()
    for (t, n, m) in mf:
        needi = max(last[('A', n)], last[('B', m)])
        while st_['issued'] <= needi:
            if st_['issued'] - st_['done'] >= 15:
                A('s_waitcnt lgkmcnt(8)'); st_['done'] = st_['issued'] - 8
            issue()
        if needi >= st_['done']:
            A(f's_waitcnt lgkmcnt({st_["issued"] - needi - 1})'); st_['done'] = needi + 1
        c = v(V_ACC+4*t,4) if t in first else '0'
        first.add(t)
        A(f'v_mfma_f32_16x16x32_bf16 {v(V_ACC+4*t,4)}, {v(V_A+4*(n%8),4)}, {a(4*m,4)}, {c}')
        for _ in range(2 if n < 4 else 1):
            if can_issue(n): issue()

def conv_epilogue(A, VM):
    HR = V_Q; XR = V_Q + 8
    for tt in range(2):
        for ch in range(2):
            A(f'ds_read_b64 {v(HR+4*tt+2*ch,2)}, v{P_HA} offset:{L_UT+ch*UTCH+480+512*tt}')
        A(f'ds_read_b128 {v(XR+4*tt,4)}, v{P_XA} offset:{L_XT+1024*tt}')
    A('s_waitcnt lgkmcnt(0)')
    A('s_barrier')
    for t in range(8): A(f'ds_write_b128 v{P_RW}, {v(V_ACC+4*t,4)} offset:{1280*t}')
    HF = V_B; XF = V_B + 16; Y = V_B + 32; P = V_B + 64; U = V_B + 72
    for tt in range(2):
        for ch in range(2):
            for j in range(2):
                A(f'v_lshlrev_b32 v{HF+8*tt+4*ch+2*j}, 16, v{HR+4*tt+2*ch+j}')
                A(f'v_and_b32 v{HF+8*tt+4*ch+2*j+1}, 0xffff0000, v{HR+4*tt+2*ch+j}')
        for i in range(4):
            A(f'v_lshlrev_b32 v{XF+8*tt+i}, 16, v{XR+4*tt+i}')
            A(f'v_and_b32 v{XF+8*tt+4+i}, 0xffff0000, v{XR+4*tt+i}')
    for tt in range(2):
        for ch in range(2):
            for j in range(2):
                h = HF + 8*tt + 4*ch + 2*j
                A(f'v_pk_mul_f32 {v(h,2)}, {v(h,2)}, {v(V_DKF,2)} op_sel:[0,{ch}] op_sel_hi:[1,{ch}]')
    for tt in range(2):
        for ch in range(2):
            for j in range(2):
                h = HF + 8*tt + 4*ch + 2*j; x = XF + 8*tt + 4*ch + 2*j
                A(f'v_pk_fma_f32 {v(x,2)}, {v(h,2)}, {v(V_GA,2)}, {v(x,2)} op_sel:[0,{ch},0] op_sel_hi:[1,{ch},1]')
    A(f's_lshl_b32 s4, s{S_PAIR}, 13')
    A('s_lshl_b32 s5, s3, 11')
    A('s_add_u32 s4, s4, s5')
    A(f's_add_u32 s5, s4, {WS_X1S:#x}')
    A(f's_add_u32 s4, s4, {WS_X1P:#x}')
    A('s_waitcnt lgkmcnt(0)')
    A('s_barrier')
    for tt in range(2):
        for w in range(4): A(f'ds_read_b128 {v(Y+16*tt+4*w,4)}, v{P_RR} offset:{w*8*1280+1280*tt}')
    for tt in range(2):
        A(f's_waitcnt lgkmcnt({4*(1-tt)})')
        ys = [(Y + 16*tt + 8*ch + 2*j, XF + 8*tt + 4*ch + 2*j, ch) for ch in range(2) for j in range(2)]
        for y, x, ch in ys: A(f'v_pk_add_f32 {v(y,2)}, {v(y,2)}, {v(y+4,2)}')
        for y, x, ch in ys: A(f'v_pk_fma_f32 {v(y,2)}, {v(y,2)}, {v(V_GA,2)}, {v(x,2)} op_sel:[0,{ch},0] op_sel_hi:[1,{ch},1]')
        for i in range(4): A(f'v_cvt_pk_bf16_f32 v{P+4*tt+i}, v{Y+16*tt+i}, v{Y+16*tt+8+i}')
        for i in range(4):
            A(f'v_lshlrev_b32 v{U+2*i}, 16, v{P+4*tt+i}')
            A(f'v_and_b32 v{U+2*i+1}, 0xffff0000, v{P+4*tt+i}')
        for i in range(4): A(f'v_pk_mul_f32 {v(U+2*i,2)}, {v(U+2*i,2)}, {v(V_CB,2)}')
        for i in range(4): A(f'v_cvt_pk_bf16_f32 v{U+8+4*tt+i}, v{U+2*i}, v{U+2*i+1}')
        VM.issue(f'buffer_store_dwordx4 {v(U+8+4*tt,4)}, v{P_L16}, {s(SRD_WS,4)}, s5 offen offset:{1024*tt} sc1')
        VM.issue(f'buffer_store_dwordx4 {v(P+4*tt,4)}, v{P_L16}, {s(SRD_WS,4)}, s4 offen offset:{1024*tt} sc1', 'x1st')

def flag_store(A, VM, which, tmp):
    A('s_lshl_b32 s4, s2, 7')
    A('s_lshl_b32 s5, s3, 2')
    A('s_add_u32 s4, s4, s5')
    A(f's_add_u32 s4, s4, {WS_FLAGS + which:#x}')
    A(f'v_mov_b32 v{tmp}, s{S_TAG}')
    A('s_mov_b64 exec, 1')
    VM.issue(f'buffer_store_dword v{tmp}, off, {s(SRD_WS,4)}, s4 sc1')
    A('s_mov_b64 exec, -1')

def flags256_text(which, D, adr):
    return [f'buffer_load_dwordx4 {v(D+4*k,4)}, v{adr}, {s(SRD_WS,4)}, s{85+k} offen offset:{which} sc1' for k in range(4)]

def flags256_setup(A):
    for k in range(4): A(f's_mov_b32 s{85+k}, {WS_FLAGS + 8192*k:#x}')

def all_tag(A, regs, T):
    A(f'v_min3_u32 v{T}, v{regs[0]}, v{regs[1]}, s{S_TAG}')
    A(f'v_max3_u32 v{T+1}, v{regs[0]}, v{regs[1]}, s{S_TAG}')
    for i in range(2, len(regs), 2):
        A(f'v_min3_u32 v{T}, v{regs[i]}, v{regs[i+1]}, v{T}')
        A(f'v_max3_u32 v{T+1}, v{regs[i]}, v{regs[i+1]}, v{T+1}')
    A(f'v_cmp_ne_u32 vcc, v{T}, v{T+1}')

def flags256_check(A, which, D, adr, T, lab):
    A.label(lab + '_chk')
    all_tag(A, list(range(D, D+16)), T)
    A(f's_cbranch_vccz {lab}_ok')
    spin_check(A, lab + '_ok')
    for t in flags256_text(which, D, adr): A(t)
    A('s_waitcnt vmcnt(0)')
    A(f's_branch {lab}_chk')
    A.label(lab + '_ok')

ACC = 16; WF = 128; XF = 184; TMP = 216
VX = 2; VWA = 6; VWB = 7; VI16 = 8; VHS = 9; VVR = 10; VST = 224
def g1_ids(A):
    A('s_and_b32 s4, s2, 7')
    A('s_lshr_b32 s5, s2, 3')
    A(f's_and_b32 s{S_RB}, s4, 6')
    A('s_lshr_b32 s6, s5, 4')
    A(f's_add_u32 s{S_RB}, s{S_RB}, s6')
    A(f's_and_b32 s{S_CBK}, s4, 1')
    A(f's_lshl_b32 s{S_CBK}, s{S_CBK}, 4')
    A('s_and_b32 s7, s5, 15')
    A(f's_add_u32 s{S_CBK}, s{S_CBK}, s7')
    A(f's_mov_b32 s{S_ROT}, s7')
    A(f's_lshl_b32 s4, s{S_RB}, 10')
    A('s_lshl_b32 s5, s3, 8')
    A(f's_add_u32 s{S_ROW4}, s4, s5')

def sn(A, d, n):
    A(f's_add_u32 s{d}, s{S_ROT}, {n}')
    A(f's_and_b32 s{d}, s{d}, 15')

def w1_dma(A, VM):
    t = V_T
    A(f's_mul_i32 s4, s{S_CBK}, {7*16384}')
    A(f's_add_u32 s4, s4, {(WS_W1F - L_W1) & 0xffffffff:#x}')
    A(f'v_add_u32 v{t}, s4, v{P_L16}')
    A(f's_mul_i32 s5, s3, {28*1024}')
    A(f's_add_u32 s5, s5, {L_W1}')
    for k in range(28):
        if k % 4 == 0:
            A('s_mov_b32 m0, s5')
            if k < 24: A('s_add_u32 s5, s5, 0x1000')
            else: A('s_nop 0')
        VM.issue(f'buffer_load_dwordx4 v{t}, {s(SRD_WS,4)}, m0 offen offset:{1024*(k%4)} sc1 lds')
    A(f's_mov_b32 m0, {L_CB}')
    A(f's_mov_b32 s4, {WS_MODP + 3072:#x}')
    VM.issue(f'buffer_load_dwordx4 v{P_L16}, {s(SRD_WS,4)}, s4 offen sc1 lds')
    VM.issue(f'buffer_load_dwordx4 v{P_L16}, {s(SRD_WS,4)}, s4 offen offset:1024 sc1 lds', 'dma')

def extra_pass(A):
    T = V_T; F = V_B; K = V_B + 96
    A('s_lshl_b32 s4, s3, 14')
    A(f's_add_u32 s4, s4, {L_W1}')
    A(f'v_add_u32 v{T}, s4, v{P_L16}')
    A('s_add_u32 s4, s3, 4')
    A('s_min_u32 s4, s4, 6')
    A('s_lshl_b32 s4, s4, 14')
    A(f's_add_u32 s4, s4, {L_W1}')
    A(f'v_add_u32 v{T+1}, s4, v{P_L16}')
    A(f'v_and_b32 v{T+2}, 1, v1')
    A(f'v_lshlrev_b32 v{T+3}, 6, v{T+2}')
    A(f'v_xor_b32 v{T+2}, 1, v{T+2}')
    A(f'v_lshlrev_b32 v{T+2}, 10, v{T+2}')
    A(f'v_and_b32 v{K+8}, 48, v1')
    A(f's_mov_b32 s4, {L_CB}')
    A(f'v_add3_u32 v{T+2}, v{T+2}, v{K+8}, s4')
    A('s_lshl_b32 s4, s3, 7')
    A(f's_add_u32 s4, s4, {L_VV}')
    A(f'v_add3_u32 v{T+3}, v{T+3}, v{K+8}, s4')
    order = []
    for k in range(16):
        b = F + 12*(k % 8)
        order += [(b, T+2, 64*k), (b + 4, T, 1024*k), (b + 8, T+1, 1024*k)]
    for i in range(15): A(f'ds_read_b128 {v(order[i][0],4)}, v{order[i][1]} offset:{order[i][2]}')
    nxt = 15
    for k in range(16):
        b = F + 12*(k % 8)
        A(f's_waitcnt lgkmcnt({nxt - 3*(k+1)})')
        for e in range(2):
            A(f'v_mfma_f32_16x16x32_bf16 {v(K+4*e,4)}, {v(b+4+4*e,4)}, {v(b,4)}, {"0" if k == 0 else v(K+4*e,4)}')
        for _ in range(3):
            if nxt < 48:
                A(f'ds_read_b128 {v(order[nxt][0],4)}, v{order[nxt][1]} offset:{order[nxt][2]}'); nxt += 1
    A(f'ds_write_b128 v{T+3}, {v(K,4)}')
    A(f'ds_write_b128 v{T+3}, {v(K+4,4)} offset:512')

def g1_addr(A):
    T = TMP
    A(f'v_and_b32 v{T}, 15, v1')
    A(f'v_lshrrev_b32 v{T+1}, 4, v1')
    A(f'v_lshlrev_b32 v{VI16}, 4, v{T}')
    A(f'v_lshlrev_b32 v{VX}, 15, v{T+1}')
    A(f'v_add3_u32 v{VX}, v{VX}, v{VI16}, s{S_ROW4}')
    for j in range(1, 4): A(f'v_add_u32 v{VX+j}, {8192*j}, v{VX}')
    A(f'v_lshlrev_b32 v{VHS}, 13, v{T+1}')
    A(f'v_add_u32 v{VHS}, v{VHS}, v{VI16}')
    A(f'v_and_b32 v{VVR}, 48, v1')
    A(f'v_add_u32 v{VVR}, {L_VV}, v{VVR}')
    A(f'v_lshlrev_b32 v{T+2}, 13, v0')
    A(f'v_and_b32 v{T+3}, 48, v1')
    A('s_lshl_b32 s4, s3, 6')
    A(f's_add_u32 s4, s4, {L_SCR+512}')
    A(f'v_add_u32 v{T+3}, s4, v{T+3}')
    A(f'v_and_b32 v{T+4}, 7, v1')
    A(f'v_lshlrev_b32 v{T+5}, 2, v{T+4}')
    A(f'v_add_u32 v{T+5}, {L_SCR+512}, v{T+5}')
    A(f'v_lshlrev_b32 v{T+4}, 3, v{T+4}')
    A(f's_lshl_b32 s4, s{S_RB}, 10')
    A(f's_lshl_b32 s5, s{S_CBK}, 5')
    A('s_add_u32 s82, s4, s5')

def x_ops(n):
    ops = []
    for j in range(4):
        def f(A, VM, j=j):
            if j == 0:
                sn(A, 81, n); A('s_lshl_b32 s81, s81, 17'); A(f's_add_u32 s81, s81, {WS_X1S:#x}')
            VM.issue(f'buffer_load_dwordx4 {a(16*n+4*j,4)}, v{VX+j}, {s(SRD_WS,4)}, s81 offen sc1', ('x', n))
        ops.append(f)
    return ops

def st2_partial(A):
    D = ACC; S = ACC + 8; Q = ACC + 16
    A('s_mov_b32 s6, 0x3f803f80')
    for k in range(8):
        A(f'v_dot2_f32_bf16 v{S+k}, v{D+k}, s6, 0')
        A(f'v_dot2_f32_bf16 v{Q+k}, v{D+k}, v{D+k}, 0')
    for k in range(8): A(f'v_permlane32_swap_b32 v{S+k}, v{Q+k}')
    for k in range(8): A(f'v_add_f32 v{S+k}, v{S+k}, v{Q+k}')
    for k in range(4): A(f'v_permlane16_swap_b32 v{S+k}, v{S+k+4}')
    for k in range(4): A(f'v_add_f32 v{S+k}, v{S+k}, v{S+k+4}')
    for r in (8, 4, 2, 1):
        for k in range(4): A(f'v_add_f32_dpp v{S+k}, v{S+k}, v{S+k} row_ror:{r} {DPPM}')
    A(f'ds_write_b128 v{TMP+3}, {v(S,4)}')

def st2_final(A, VM):
    D = VST
    for w in range(4): A(f'ds_read2_b32 {v(D+2*w,2)}, v{TMP+5} offset0:{16*w} offset1:{16*w+8}')
    A('s_waitcnt lgkmcnt(0)')
    A(f'v_pk_add_f32 {v(D,2)}, {v(D,2)}, {v(D+2,2)}')
    A(f'v_pk_add_f32 {v(D+4,2)}, {v(D+4,2)}, {v(D+6,2)}')
    A(f'v_pk_add_f32 {v(D,2)}, {v(D,2)}, {v(D+4,2)}')
    finish_stats(A, D, D+1, D+2)
    A(f'v_mov_b32 v{D+3}, s{S_TAG}')
    A('s_lshl_b32 s4, s82, 1')
    A(f's_add_u32 s4, s4, {WS_ST2G:#x}')
    A('s_mov_b64 exec, 0xff')
    VM.issue(f'buffer_store_dwordx2 {v(D+2,2)}, v{TMP+4}, {s(SRD_WS,4)}, s4 offen sc1')
    A('s_mov_b64 exec, -1')

def lds_addr_ops(n):
    def f(A, VM):
        sn(A, 83, n); A('s_lshl_b32 s83, s83, 10'); A(f's_add_u32 s83, s83, {L_W1}')
        A(f'v_lshl_add_u32 v{VWA}, v1, 4, s83')
        A(f'v_add_u32 v{VWB}, 0x10000, v{VWA}')
    return f
def w_reads(n):
    b = n & 1
    return [f'ds_read_b128 {v(WF+28*b+4*T,4)}, v{VWA if T < 4 else VWB} offset:{16384*(T&3)}' for T in range(7)]
def x_movs(n):
    b = n & 1
    return [f'v_accvgpr_read_b32 v{XF+16*b+4*t+j}, a{16*n+4*j+t}' for t in range(4) for j in range(4)]

VW2 = 12
def kap(A, d, n):
    A(f's_add_u32 s{d}, s{S_K0}, {n}')
    A(f's_sub_u32 s10, s{d}, 56')
    A(f's_cmp_ge_u32 s{d}, 56')
    A(f's_cselect_b32 s{d}, s10, s{d}')
def g2_ids(A):
    A('s_and_b32 s4, s2, 7')
    A('s_lshr_b32 s5, s2, 3')
    A(f's_lshl_b32 s{S_R64}, s4, 2')
    A('s_lshr_b32 s6, s5, 3')
    A(f's_add_u32 s{S_R64}, s{S_R64}, s6')
    A(f's_and_b32 s{S_NB}, s5, 7')
    A(f's_mul_i32 s{S_K0}, s{S_NB}, 7')
    A('s_mul_i32 s6, s3, 14')
    A(f's_add_u32 s{S_K0}, s{S_K0}, s6')
    A(f's_mul_i32 s4, s{S_NB}, {4*57344}')
    A(f's_add_u32 s4, s4, {WS_W2F:#x}')
    A(f'v_lshl_add_u32 v{VW2}, v1, 4, s4')
    for c in range(1, 4): A(f'v_add_u32 v{VW2+c}, {57344*c}, v{VW2}')
def w2_ops():
    ops = []
    for n in range(14):
        for c in range(4):
            def f(A, VM, c=c, n=n):
                if c == 0: kap(A, 92, n); A('s_lshl_b32 s92, s92, 10')
                VM.issue(f'buffer_load_dwordx4 {a(16*n+4*c,4)}, v{VW2+c}, {s(SRD_WS,4)}, s92 offen sc1', ('w', n))
            ops.append(f)
    return ops

PRE = 5
def gemm1(A, VM):
    A(f's_add_u32 s4, s82, {WS_X1P:#x}')
    VM.issue(f'buffer_load_dwordx4 {v(ACC,4)}, v{TMP+2}, {s(SRD_WS,4)}, s4 offen sc1')
    VM.issue(f'buffer_load_dwordx4 {v(ACC+4,4)}, v{TMP+2}, {s(SRD_WS,4)}, s4 offen offset:16 sc1', 'st')
    for n in range(PRE):
        for f in x_ops(n): f(A, VM)
    lds_addr_ops(0)(A, VM)
    for r in w_reads(0): A(r)
    st(A, 9)
    VM.wait('st')
    st2_partial(A)
    A('s_waitcnt lgkmcnt(0)')
    A('s_barrier')
    st2_final(A, VM)
    VM.wait(('x', 0))
    for m in x_movs(0): A(m)
    st(A, 10)
    w2 = w2_ops(); w2i = 0
    for n in range(16):
        b = n & 1
        mf = []
        for T_ in range(7):
            for t in range(4):
                d = v(ACC + 16*T_ + 4*t, 4)
                mf.append(f'v_mfma_f32_16x16x32_bf16 {d}, {v(WF+28*b+4*T_,4)}, {v(XF+16*b+4*t,4)}, {d if n else "0"}')
        fill = []
        if n + 1 < 16:
            fill.append(lds_addr_ops(n+1))
            for r in w_reads(n+1): fill.append(lambda A, VM, r=r: A(r))
            mv = x_movs(n+1)
            for k in range(0, 16, 2):
                def f(A, VM, k=k, n=n, mv=mv):
                    if k == 0: VM.wait(('x', n+1))
                    A(mv[k]); A(mv[k+1])
                fill.append(f)
        vm = []
        if n + PRE < 16: vm = x_ops(n + PRE)
        else:
            cnt = 5
            vm = w2[w2i:w2i+cnt]; w2i += cnt
        if n == 13:
            def st2(A, VM):
                A(f'v_lshlrev_b32 v{TMP}, 1, v{VI16}')
                A(f's_lshl_b32 s88, s{S_ROW4}, 1')
                A(f's_add_u32 s88, s88, {WS_ST2G:#x}')
                VM.issue(f'buffer_load_dwordx4 {v(VST,4)}, v{TMP}, {s(SRD_WS,4)}, s88 offen sc1')
                VM.issue(f'buffer_load_dwordx4 {v(VST+4,4)}, v{TMP}, {s(SRD_WS,4)}, s88 offen offset:16 sc1', 'st2')
            vm = [st2] + vm
        A('s_waitcnt lgkmcnt(0)')
        slots = [None] * 28
        for i, f in enumerate(fill): slots[i] = f
        pos = [16, 18, 20, 22, 24, 26]
        for i, f in enumerate(vm): slots[pos[i]] = f
        for i, m in enumerate(mf):
            A(m)
            if slots[i]: slots[i](A, VM)
    st(A, 11)
    V1 = WF
    for T_ in range(7):
        A(f'ds_read_b128 {v(V1+8*T_,4)}, v{VVR} offset:{128*T_}')
        A(f'ds_read_b128 {v(V1+8*T_+4,4)}, v{VVR} offset:{128*T_+64}')
    VM.wait('st2')
    T = TMP + 2
    A.label('L_s2_chk')
    A(f'v_min3_u32 v{T}, v{VST+1}, v{VST+3}, s{S_TAG}')
    A(f'v_max3_u32 v{T+1}, v{VST+1}, v{VST+3}, s{S_TAG}')
    A(f'v_min3_u32 v{T}, v{VST+5}, v{VST+7}, v{T}')
    A(f'v_max3_u32 v{T+1}, v{VST+5}, v{VST+7}, v{T+1}')
    A(f'v_cmp_ne_u32 vcc, v{T}, v{T+1}')
    A('s_cbranch_vccz L_s2_ok')
    spin_check(A, 'L_s2_ok')
    A(f'buffer_load_dwordx4 {v(VST,4)}, v{TMP}, {s(SRD_WS,4)}, s88 offen sc1')
    A(f'buffer_load_dwordx4 {v(VST+4,4)}, v{TMP}, {s(SRD_WS,4)}, s88 offen offset:16 sc1')
    A('s_waitcnt vmcnt(0)')
    A('s_branch L_s2_chk')
    A.label('L_s2_ok')
    RC = XF
    for t in range(4):
        A(f'v_lshlrev_b32 v{RC+4*t}, 16, v{VST+2*t}')
        A(f'v_and_b32 v{RC+4*t+2}, 0xffff0000, v{VST+2*t}')
    for t in range(4): A(f'v_rcp_f32 v{RC+4*t}, v{RC+4*t}')
    A('s_mov_b32 s4, 0xbfb8aa3b')
    A('s_mov_b32 s5, 0xbfb8aa3b')
    A(f's_mul_i32 s6, s{S_CBK}, {28*8192}')
    A(f's_add_u32 s6, s6, s{S_ROW4}')
    A(f's_add_u32 s6, s6, {WS_HHP:#x}')
    for t in range(4):
        A(f'v_mul_f32 v{RC+4*t+1}, 0xbfb8aa3b, v{RC+4*t}')
        A(f'v_mul_f32 v{RC+4*t+2}, -v{RC+4*t+2}, v{RC+4*t}')
    C = XF + 16; H = 232
    for T_ in range(7):
        A(f's_waitcnt lgkmcnt({12 - 2*T_})')
        v1 = V1 + 8*T_; v2 = v1 + 4
        A(f'v_pk_mul_f32 {v(v1,2)}, {v(v1,2)}, s[4:5]')
        A(f'v_pk_mul_f32 {v(v2,2)}, {v(v2,2)}, s[4:5]')
        h = H + 4*(T_ & 1)
        def w2go(k):
            nonlocal w2i
            for _ in range(k):
                if w2i < len(w2): w2[w2i](A, VM); w2i += 1
        for t in range(4):
            c = C + 4*t
            A(f'v_pk_fma_f32 {v(c+2,2)}, {v(v1+2,2)}, {v(RC+4*t+2,2)}, {v(v2+2,2)} op_sel:[0,0,0] op_sel_hi:[1,0,1]')
        for t in range(4):
            c = C + 4*t
            A(f'v_pk_fma_f32 {v(c,2)}, {v(v1,2)}, {v(RC+4*t+2,2)}, {v(v2,2)} op_sel:[0,0,0] op_sel_hi:[1,0,1]')
        w2go(1)
        for t in range(4):
            c = C + 4*t; ac = ACC + 16*T_ + 4*t
            A(f'v_pk_fma_f32 {v(c,2)}, {v(ac,2)}, {v(RC+4*t,2)}, {v(c,2)} op_sel:[0,1,0] op_sel_hi:[1,1,1]')
        for t in range(4):
            c = C + 4*t; ac = ACC + 16*T_ + 4*t
            A(f'v_pk_fma_f32 {v(c+2,2)}, {v(ac+2,2)}, {v(RC+4*t,2)}, {v(c+2,2)} op_sel:[0,0,0] op_sel_hi:[1,0,1]')
        w2go(1)
        for t in range(4):
            A(f'v_exp_f32 v{C+4*t}, v{C+4*t}')
            A(f'v_exp_f32 v{C+4*t+1}, v{C+4*t+1}')
        w2go(1)
        for t in range(4): A(f'v_pk_add_f32 {v(C+4*t,2)}, {v(C+4*t,2)}, 1.0 op_sel_hi:[1,0]')
        for t in range(4):
            A(f'v_rcp_f32 v{C+4*t}, v{C+4*t}')
            A(f'v_rcp_f32 v{C+4*t+1}, v{C+4*t+1}')
        w2go(2 if T_ < 6 else 99)
        for t in range(4): A(f'v_pk_mul_f32 {v(C+4*t,2)}, {v(C+4*t,2)}, {v(C+4*t+2,2)}')
        for t in range(4): A(f'v_cvt_pk_bf16_f32 v{h+t}, v{C+4*t}, v{C+4*t+1}')
        VM.issue(f'buffer_store_dwordx4 {v(h,4)}, v{VHS}, {s(SRD_WS,4)}, s6 offen sc1', 'hhst')
        if T_ < 6: A('s_add_u32 s6, s6, 0x8000')
    assert w2i == len(w2)

A2 = 16; RAW = 96; FR = 224; X1R = 80; GBR = 88; VH = 2
def h_ops(n):
    ops = []
    for j in range(4):
        def f(A, VM, j=j):
            if j == 0: kap(A, 93, n); A('s_lshl_b32 s93, s93, 17'); A(f's_add_u32 s93, s93, {WS_HHP:#x}')
            VM.issue(f'buffer_load_dwordx4 {v(RAW+16*(n%8)+4*j,4)}, v{VH+j}, {s(SRD_WS,4)}, s93 offen sc1', ('h', n))
        ops.append(f)
    return ops
def h_movs(n):
    b = n & 1
    return [f'v_mov_b32 v{FR+16*b+4*t+j}, v{RAW+16*(n%8)+4*j+t}' for t in range(4) for j in range(4)]

def g2_pre(A, VM):
    tmp = 6
    A(f'v_and_b32 v{tmp}, 15, v1')
    A(f'v_lshrrev_b32 v{tmp+1}, 4, v1')
    A(f's_lshl_b32 s4, s{S_R64}, 8')
    A(f'v_lshlrev_b32 v{VH}, 15, v{tmp+1}')
    A(f'v_lshl_add_u32 v{VH}, v{tmp}, 4, v{VH}')
    A(f'v_add_u32 v{VH}, s4, v{VH}')
    for j in range(1, 4): A(f'v_add_u32 v{VH+j}, {8192*j}, v{VH}')
    A(f'v_lshlrev_b32 v{tmp+2}, 16, v{tmp+1}')
    A(f'v_lshl_add_u32 v{tmp+2}, v{tmp}, 4, v{tmp+2}')
    A(f's_lshl_b32 s4, s{S_NB}, 18')
    A(f's_lshl_b32 s5, s{S_R64}, 8')
    A('s_add_u32 s4, s4, s5')
    A('s_lshl_b32 s5, s3, 2')
    A('s_add_u32 s4, s4, s5')
    A(f's_add_u32 s4, s4, {WS_X1P:#x}')
    for jj in range(8):
        VM.issue(f'buffer_load_dword v{X1R+jj}, v{tmp+2}, {s(SRD_WS,4)}, s4 offen sc1')
        if jj < 7: A('s_add_u32 s4, s4, 0x2000')
    A(f'v_lshlrev_b32 v{tmp+2}, 5, v{tmp+1}')
    A(f's_lshl_b32 s4, s{S_NB}, 7')
    A(f's_add_u32 s4, s4, {WS_MODP + 5*1024:#x}')
    VM.issue(f'buffer_load_dwordx4 {v(GBR,4)}, v{tmp+2}, {s(SRD_WS,4)}, s4 offen sc1')
    VM.issue(f'buffer_load_dwordx4 {v(GBR+4,4)}, v{tmp+2}, {s(SRD_WS,4)}, s4 offen offset:16 sc1', 'epi')
    A(f'v_lshlrev_b32 v10, 12, v{tmp}')
    A(f'v_lshl_add_u32 v10, v{tmp+1}, 5, v10')
    A('s_lshl_b32 s4, s3, 12')
    A(f's_add_u32 s4, s4, {L_G2}')
    A('v_lshl_add_u32 v8, v1, 4, s4')
    A('s_lshl_b32 s4, s3, 14')
    A(f's_add_u32 s4, s4, {L_G2}')
    A('v_lshl_add_u32 v9, v1, 4, s4')

def hh_poll(A):
    A('s_cmp_lg_u32 s3, 0')
    A('s_cbranch_scc1 L_hh_ok')
    A('v_and_b32 v11, 15, v1')
    A('v_lshlrev_b32 v11, 3, v11')
    A('v_bfe_u32 v6, v1, 4, 1')
    A('v_add_u32 v11, v11, v6')
    A('v_lshlrev_b32 v11, 7, v11')
    A(f's_lshr_b32 s4, s{S_R64}, 2')
    A('s_and_b32 s5, s4, 1')
    A('s_lshl_b32 s5, s5, 7')
    A('s_and_b32 s4, s4, 6')
    A('s_add_u32 s4, s4, s5')
    A('s_lshl_b32 s4, s4, 7')
    A(f's_add_u32 s4, s4, {WS_FLAGS + F_HH:#x}')
    A.label('L_hh_chk')
    A(f'buffer_load_dwordx4 v[16:19], v11, {s(SRD_WS,4)}, s4 offen sc1')
    A('s_waitcnt vmcnt(0)')
    all_tag(A, [16, 17, 18, 19], 6)
    A('s_cbranch_vccz L_hh_ok')
    spin_check(A, 'L_hh_ok')
    A('s_branch L_hh_chk')
    A.label('L_hh_ok')

HPRE = 5
def gemm2(A, VM):
    for n in range(HPRE):
        for f in h_ops(n): f(A, VM)
    VM.wait(('h', 0))
    for m in h_movs(0): A(m)
    st(A, 13)
    for n in range(14):
        b = n & 1
        mf = []
        for t in range(4):
            for c in range(4):
                d = v(A2 + 16*t + 4*c, 4)
                mf.append(f'v_mfma_f32_16x16x32_bf16 {d}, {a(16*n+4*c,4)}, {v(FR+16*b+4*t,4)}, {d if n else "0"}')
        slots = [None] * 16
        if n + HPRE < 14:
            for i, f in enumerate(h_ops(n + HPRE)): slots[2*i] = f
        if n + 1 < 14:
            mv = h_movs(n+1)
            for k in range(0, 16, 2):
                def f(A, VM, k=k, n=n, mv=mv):
                    if k == 0: VM.wait(('h', n+1))
                    A(mv[k]); A(mv[k+1])
                slots[8 + k//2] = f
        for i, m in enumerate(mf):
            A(m)
            if slots[i]: slots[i](A, VM)
    st(A, 14)
    XF2 = RAW + 64; GF = RAW + 80
    unp = []
    for k in range(8):
        unp += [f'v_lshlrev_b32 v{XF2+2*k}, 16, v{X1R+k}', f'v_and_b32 v{XF2+2*k+1}, 0xffff0000, v{X1R+k}',
                f'v_lshlrev_b32 v{GF+2*k}, 16, v{GBR+k}', f'v_and_b32 v{GF+2*k+1}, 0xffff0000, v{GBR+k}']
    for t in range(4):
        for c in range(4):
            A(f'ds_write_b128 v8, {v(A2+16*t+4*c,4)} offset:{16384*t+1024*c}')
            for u in unp[2*(4*t+c):2*(4*t+c)+2]: A(u)
            if (4*t + c) == 11: A('s_waitcnt lgkmcnt(4)')
    A(f's_lshl_b32 s4, s{S_R64}, 16')
    A('s_lshl_b32 s5, s3, 10')
    A('s_add_u32 s4, s4, s5')
    A(f's_lshl_b32 s5, s{S_NB}, 7')
    A('s_add_u32 s4, s4, s5')
    A('s_waitcnt lgkmcnt(0)')
    A('s_barrier')
    P = RAW
    for w in range(4):
        for c in range(4):
            A(f'ds_read_b128 {v(P+16*w+4*c,4)}, v9 offset:{4096*w+1024*c}')
            if w == 3 and c == 0: A('s_waitcnt lgkmcnt(5)')
    for k in range(8): A(f'v_pk_add_f32 {v(P+2*k,2)}, {v(P+2*k,2)}, {v(P+16+2*k,2)}')
    A('s_waitcnt lgkmcnt(0)')
    for k in range(8): A(f'v_pk_add_f32 {v(P+32+2*k,2)}, {v(P+32+2*k,2)}, {v(P+48+2*k,2)}')
    for k in range(8): A(f'v_pk_add_f32 {v(P+2*k,2)}, {v(P+2*k,2)}, {v(P+32+2*k,2)}')
    for r in range(4):
        for c in range(4):
            dd = 4*r + c
            A(f'v_fma_f32 v{XF2+dd}, v{P+4*c+r}, v{GF+dd}, v{XF2+dd}')
    O = A2
    for k in range(8): A(f'v_cvt_pk_bf16_f32 v{O+k}, v{XF2+2*k}, v{XF2+2*k+1}')
    A(f'buffer_store_dwordx4 {v(O,4)}, v10, {s(SRD_OUT,4)}, s4 offen')
    A(f'buffer_store_dwordx4 {v(O+4,4)}, v10, {s(SRD_OUT,4)}, s4 offen offset:16')

def kernel(name, prefetch=True):
    global V_DIAG
    A = Asm()
    VM = Tracker(A, 'vmcnt', 63)
    A('s_cmp_ge_u32 s2, 256')
    A('s_cbranch_scc1 L_end')
    kernarg(A)
    if DIAG: A(f'v_mov_b32 v{V_DIAG}, 0')
    st(A, 0)
    if prefetch:
        A('s_getpc_b64 s[8:9]')
        A('s_lshr_b32 s4, s2, 3')
        A('s_lshl_b32 s4, s4, 11')
        A('v_lshl_add_u32 v4, v0, 3, s4')
        A(f'v_min_u32 v4, CODE_LAST, v4')
        A('v_mov_b32 v5, 0')
        A('v_lshl_add_u64 v[4:5], v[4:5], 0, s[8:9]')
        VM.issue('global_load_dword v59, v[4:5], off')
    ids(A)
    A(f's_mov_b32 s{S_SPIN}, {SPIN}')
    A('s_waitcnt lgkmcnt(0)')
    A(f's_load_dword s{S_TAG}, {s(P_WS,2)}, {WS_EPOCH}')
    srd(A, SRD_X, P_X, 2048*1024)
    j1_issue(A, VM)
    params_issue(A, VM)
    srd(A, SRD_WMOD, P_WMOD, 512*6144)
    j2_issue(A, VM)
    srd(A, SRD_WD, P_WD, 1792*1024)
    j3_issue(A, VM)
    srd(A, SRD_WS, P_WS, WS_END2); srd(A, SRD_OUT, P_OUT, 2048*1024)
    st(A, 1)
    precompute(A)
    g1_ids(A)
    flags256_setup(A)
    A('s_waitcnt lgkmcnt(0)')
    A(f's_add_u32 s{S_TAG}, s{S_TAG}, 1')
    for k in range(8):
        A(f'v_mov_b32 v{V_Q+4*k+1}, s{S_TAG}')
        A(f'v_mov_b32 v{V_Q+4*k+3}, s{S_TAG}')
    st(A, 2)
    VM.wait('j1')
    j1_process(A, VM)
    VM.wait('j2')
    j2_process(A)
    st(A, 3)
    kgen_valu(A)
    VM.wait('j3')
    j3_process(A, VM)
    sweep_issue(A, VM)
    st(A, 4)
    A('s_waitcnt lgkmcnt(0)')
    A('s_barrier')
    kgen_mfma(A)
    VM.wait('j3st')
    flag_store(A, VM, F_REP, V_T)
    A('s_waitcnt lgkmcnt(0)')
    A('s_barrier')
    expand(A)
    st(A, 5)
    sweep_check(A, VM)
    st(A, 6)
    hbuild(A)
    A('s_or_b32 s4, s2, s3')
    A('s_cmp_lg_u32 s4, 0')
    A('s_cbranch_scc1 L_noep')
    A(f'v_mov_b32 v{V_T}, s{S_TAG}')
    A('s_mov_b64 exec, 1')
    A(f'buffer_store_dword v{V_T}, off, {s(SRD_WS,4)}, 0 offset:{WS_EPOCH} sc1')
    A('s_mov_b64 exec, -1')
    A.label('L_noep')
    FD = 32
    for t in flags256_text(F_REP, FD, P_FL): VM.issue(t, 'frep')
    A('s_waitcnt lgkmcnt(0)')
    A('s_barrier')
    conv_main(A)
    st(A, 7)
    VM.wait('frep')
    flags256_check(A, F_REP, FD, P_FL, V_T, 'L_rep')
    conv_epilogue(A, VM)
    w1_dma(A, VM)
    VM.wait('x1st')
    flag_store(A, VM, F_X1, V_T+1)
    VM.wait('dma')
    A('s_barrier')
    A('s_cmp_lg_u32 s3, 0')
    A('s_cbranch_scc1 L_x1_np')
    for t in flags256_text(F_X1, FD, P_FL): A(t)
    A.label('L_x1_np')
    extra_pass(A)
    st(A, 8)
    A('s_cmp_lg_u32 s3, 0')
    A('s_cbranch_scc1 L_x1_ok')
    A('s_waitcnt vmcnt(0)')
    flags256_check(A, F_X1, FD, P_FL, V_T, 'L_x1')
    if DIAG: A(f'v_mov_b32 v255, v{V_DIAG}')
    V_DIAG = 255
    g1_addr(A)
    g2_ids(A)
    A('s_waitcnt lgkmcnt(0)')
    A('s_barrier')
    gemm1(A, VM)
    VM.wait('hhst')
    flag_store(A, VM, F_HH, 6)
    if DIAG: A(f'v_mov_b32 v15, v{V_DIAG}')
    V_DIAG = 15
    st(A, 12)
    g2_pre(A, VM)
    hh_poll(A)
    A('s_barrier')
    gemm2(A, VM)
    stamp_flush(A, V_DIAG, 0, 2)
    A.label('L_end')
    A('s_endpgm')
    A.label('L_code_end')
    V_DIAG = 49
    body = A.finish().replace('CODE_LAST', f'(L_code_end - {name} - 128)')
    return kernel_head(name) + body, kernel_desc(name, 512, 256)

def j2_process(A):
    D, C, T, sd, lds = J2D, J2C, J2T, S_J2, L_SCR + 256
    ACC_ = T; U = T + 8
    for k in range(4): A(f'v_mul_f32 v{U+k}, 0xbfb8aa3b, v{C+k}')
    for k in range(4): A(f'v_exp_f32 v{U+k}, v{U+k}')
    for k in range(4): A(f'v_add_f32 v{U+k}, 1.0, v{U+k}')
    for k in range(4): A(f'v_rcp_f32 v{U+k}, v{U+k}')
    for k in range(4): A(f'v_mul_f32 v{C+k}, v{C+k}, v{U+k}')
    for k in range(0, 4, 2):
        A(f'v_cvt_pk_bf16_f32 v{U+k}, v{C+k}, v{C+k+1}')
    for k in range(0, 4, 2):
        A(f'v_lshlrev_b32 v{C+k}, 16, v{U+k}')
        A(f'v_and_b32 v{C+k+1}, 0xffff0000, v{U+k}')
    X = 160
    for k in range(4):
        hi = k & 1; cp = C + (k & ~1)
        for j in range(4):
            A(f'v_lshlrev_b32 v{X+2*j}, 16, v{D+4*k+j}')
            A(f'v_and_b32 v{X+2*j+1}, 0xffff0000, v{D+4*k+j}')
        for j in range(4):
            if k == 0: A(f'v_pk_mul_f32 {v(ACC_+2*j,2)}, {v(X+2*j,2)}, {v(cp,2)} op_sel:[0,{hi}] op_sel_hi:[1,{hi}]')
            else: A(f'v_pk_fma_f32 {v(ACC_+2*j,2)}, {v(X+2*j,2)}, {v(cp,2)}, {v(ACC_+2*j,2)} op_sel:[0,{hi},0] op_sel_hi:[1,{hi},1]')
    A(f'v_lshrrev_b32 v{U}, 4, v1')
    A(f'v_and_b32 v{U+1}, 1, v1')
    for j in range(4): A(f'v_permlane32_swap_b32 v{ACC_+j}, v{ACC_+j+4}')
    A(f'v_lshl_add_u32 v{U}, v{U+1}, 2, v{U}')
    for j in range(4): A(f'v_add_f32 v{ACC_+j}, v{ACC_+j}, v{ACC_+j+4}')
    A('s_lshl_b32 s4, s3, 6')
    A(f's_add_u32 s4, s4, {lds}')
    for j in range(2): A(f'v_permlane16_swap_b32 v{ACC_+j}, v{ACC_+j+2}')
    A(f'v_lshl_add_u32 v{U}, v{U}, 3, s4')
    for j in range(2): A(f'v_add_f32 v{ACC_+j}, v{ACC_+j}, v{ACC_+j+2}')
    for m in ('row_ror:8', 'row_ror:4', 'quad_perm:[2,3,0,1]'):
        for j in range(2): A(f'v_add_f32_dpp v{ACC_+j}, v{ACC_+j}, v{ACC_+j} {m} {DPPM}')
    A(f'ds_write_b64 v{U}, {v(ACC_,2)}')
    A(f'v_and_b32 v{U}, 7, v1')
    A(f'v_lshlrev_b32 v{U+1}, 3, v{U}')
    A(f'v_add_u32 v{U+2}, {lds}, v{U+1}')
    A(f'v_lshlrev_b32 v{U}, 2, v{U}')
    A('s_waitcnt lgkmcnt(0)')
    A('s_barrier')
    A('s_cmp_lg_u32 s3, 0')
    A('s_cbranch_scc1 L_j2_done')
    for w in range(4): A(f'ds_read_b64 {v(ACC_+2*w,2)}, v{U+2} offset:{64*w}')
    A(f's_lshr_b32 s4, s{sd}, 5')
    A('s_cmp_eq_u32 s4, 1')
    A('s_cselect_b32 s6, 1.0, 0')
    A('s_cmp_eq_u32 s4, 4')
    A('s_cselect_b32 s6, 1.0, s6')
    A(f's_lshl_b32 s4, s{sd}, 6')
    A(f's_add_u32 s4, s4, {WS_MODG:#x}')
    A(f's_lshl_b32 s5, s{sd}, 5')
    A(f's_add_u32 s5, s5, {WS_MODP:#x}')
    A('s_waitcnt lgkmcnt(0)')
    A(f'v_pk_add_f32 {v(ACC_,2)}, {v(ACC_,2)}, {v(ACC_+2,2)}')
    A(f'v_pk_add_f32 {v(ACC_+4,2)}, {v(ACC_+4,2)}, {v(ACC_+6,2)}')
    A(f'v_pk_add_f32 {v(ACC_,2)}, {v(ACC_,2)}, {v(ACC_+4,2)}')
    A(f'v_cvt_pk_bf16_f32 v{ACC_}, v{ACC_}, v{ACC_+1}')
    A(f'v_lshlrev_b32 v{ACC_+2}, 16, v{ACC_}')
    A(f'v_and_b32 v{ACC_+3}, 0xffff0000, v{ACC_}')
    A(f'v_add_f32 v{ACC_+2}, s6, v{ACC_+2}')
    A(f'v_add_f32 v{ACC_+3}, s6, v{ACC_+3}')
    A(f'v_cvt_pk_bf16_f32 v{ACC_}, v{ACC_+2}, v{ACC_+3}')
    A(f'v_mov_b32 v{ACC_+1}, s{S_TAG}')
    A('s_mov_b64 exec, 0xff')
    A(f'buffer_store_dwordx2 {v(ACC_,2)}, v{U+1}, {s(SRD_WS,4)}, s4 offen sc1')
    A(f'buffer_store_dword v{ACC_}, v{U}, {s(SRD_WS,4)}, s5 offen sc1')
    A('s_mov_b64 exec, -1')
    A.label('L_j2_done')

if __name__ == '__main__':
    hdr = open('cdna_kernels/' + NAME + '.s.ref').read().split('; Override launch')[0]
    n = NAME + '_kernel'
    t, d = kernel(n, prefetch=(os.environ.get('NOPF', '0') == '0'))
    out = hdr + f'; @launch grid=(256,1,1) block=(256,1,1) lds={L_END}\n.amdgcn_target "amdgcn-amd-amdhsa--gfx950"\n.text\n' + t + '.section .rodata,"a"\n' + d
    dst = sys.argv[1] if len(sys.argv) > 1 else 'cdna_kernels/' + NAME + '.s'
    open(dst, 'w').write(out)
    print('wrote', dst, len(out), 'lds', L_END)
```

```python
from asmlib import *
NAME = 'adaLN_cond__ssm_conv_s4__glu_gated_glu__prompt'
WS_EPOCH = 0
WS_STATS1 = 0x1000
WS_MODG = 0x5000
WS_MODP = 0x8000
WS_STATS2 = 0xA000
WS_FLAGS = 0x10000
WS_W1F = 0x100000
WS_W2F = 0x480000
WS_X1P = 0x640000
WS_X1S = 0x840000
WS_HHP = 0xA40000
WS_END = 0x1140000
P_X, P_ARE, P_AIM, P_BRE, P_BIM, P_CRE, P_CIM, P_LDT = 16, 18, 20, 22, 24, 26, 28, 30
P_DSK, P_BX, P_WG, P_WU, P_WD, P_C, P_WMOD, P_OUT = 32, 34, 36, 38, 40, 42, 44, 46
P_DBG, P_WS = 48, 50
SRD_WS = 52
SRD_X = 56
SRD_WMOD = 60
SRD_OUT = 64
SRD_WD = 68

def kernarg(A, lo=True, hi=True):
    if lo: A('s_load_dwordx16 s[16:31], s[0:1], 0')
    if hi: A('s_load_dwordx16 s[32:47], s[0:1], 64')
    A('s_load_dwordx4 s[48:51], s[0:1], 128')

def srd(A, d, ptr, nbytes):
    A(f's_mov_b32 s{d}, s{ptr}')
    A(f's_and_b32 s{d+1}, s{ptr+1}, 0xffff')
    A(f's_mov_b32 s{d+2}, {nbytes:#x}')
    A(f's_mov_b32 s{d+3}, 0x20000')

def kernel_head(name):
    return f'.globl {name}\n.p2align 8\n.type {name},@function\n{name}:\n'

def kernel_desc(name, nvgpr, accum, nsgpr=100):
    return f""".p2align 6
.amdhsa_kernel {name}
  .amdhsa_next_free_vgpr {nvgpr}
  .amdhsa_next_free_sgpr {nsgpr}
  .amdhsa_accum_offset {accum}
  .amdhsa_group_segment_fixed_size 0
  .amdhsa_kernarg_size 144
  .amdhsa_user_sgpr_count 2
  .amdhsa_user_sgpr_kernarg_segment_ptr 1
  .amdhsa_system_sgpr_workgroup_id_x 1
.end_amdhsa_kernel
"""
DPPM = 'row_mask:0xf bank_mask:0xf'
def cmul(A, d, x, y):
    A(f'v_pk_mul_f32 {v(d,2)}, {v(x,2)}, {v(y,2)} op_sel:[0,0] op_sel_hi:[1,0]')
    A(f'v_pk_fma_f32 {v(d,2)}, {v(x,2)}, {v(y,2)}, {v(d,2)} op_sel:[1,1,0] op_sel_hi:[0,1,1] neg_lo:[1,0,0]')

import os
DIAG = bool(int(os.environ.get('DIAG', '0')))
WS_DIAG = 0x40000
def stamp(A, reg, k):
    if not DIAG: return
    A('s_memrealtime s[94:95]')
    A('s_memtime s[96:97]')
    A('s_waitcnt lgkmcnt(0)')
    A(f'v_writelane_b32 v{reg}, s94, {k}')
    A(f'v_writelane_b32 v{reg}, s96, {k+16}')
def stamp_flush(A, reg, kern, tmp):
    if not DIAG: return
    A('s_waitcnt vmcnt(0)')
    stamp(A, reg, 15)
    A('s_lshl_b32 s94, s2, 9')
    A('s_lshl_b32 s95, s3, 7')
    A('s_add_u32 s94, s94, s95')
    A(f's_add_u32 s94, s94, {WS_DIAG + kern*131072:#x}')
    A(f'v_lshlrev_b32 v{tmp}, 2, v1')
    A('s_mov_b32 exec_lo, -1'); A('s_mov_b32 exec_hi, 0')
    A(f'buffer_store_dword v{reg}, v{tmp}, {s(SRD_WS,4)}, s94 offen')
    dw = int(os.environ.get('DBGWG', '-1'))
    if dw >= 0:
        A('s_lshl_b32 s94, s2, 2')
        A('s_add_u32 s94, s94, s3')
        A(f's_cmp_lg_u32 s94, {dw*4}')
        A('s_cbranch_scc1 L_dbg_skip')
        A(f'v_readlane_b32 s94, v{reg}, 0')
        A(f'v_subrev_u32 v{reg}, s94, v{reg}')
        A('s_mov_b64 exec, 0xffff')
        A(f'global_store_dword v{tmp}, v{reg}, {s(P_DBG,2)}')
        A.label('L_dbg_skip')
```

```python
from asmlib import *
NAME = 'adaLN_cond__ssm_conv_s4__glu_gated_glu__prompt'
WS_EPOCH = 0
WS_STATS1 = 0x1000
WS_MODG = 0x5000
WS_MODP = 0x8000
WS_STATS2 = 0xA000
WS_FLAGS = 0x10000
WS_W1F = 0x100000
WS_W2F = 0x480000
WS_X1P = 0x640000
WS_X1S = 0x840000
WS_HHP = 0xA40000
WS_END = 0x1140000
P_X, P_ARE, P_AIM, P_BRE, P_BIM, P_CRE, P_CIM, P_LDT = 16, 18, 20, 22, 24, 26, 28, 30
P_DSK, P_BX, P_WG, P_WU, P_WD, P_C, P_WMOD, P_OUT = 32, 34, 36, 38, 40, 42, 44, 46
P_DBG, P_WS = 48, 50
SRD_WS = 52
SRD_X = 56
SRD_WMOD = 60
SRD_OUT = 64
SRD_WD = 68

def kernarg(A, lo=True, hi=True):
    if lo: A('s_load_dwordx16 s[16:31], s[0:1], 0')
    if hi: A('s_load_dwordx16 s[32:47], s[0:1], 64')
    A('s_load_dwordx4 s[48:51], s[0:1], 128')

def srd(A, d, ptr, nbytes):
    A(f's_mov_b32 s{d}, s{ptr}')
    A(f's_and_b32 s{d+1}, s{ptr+1}, 0xffff')
    A(f's_mov_b32 s{d+2}, {nbytes:#x}')
    A(f's_mov_b32 s{d+3}, 0x20000')

def kernel_head(name):
    return f'.globl {name}\n.p2align 8\n.type {name},@function\n{name}:\n'

def kernel_desc(name, nvgpr, accum, nsgpr=102):
    return f""".p2align 6
.amdhsa_kernel {name}
  .amdhsa_next_free_vgpr {nvgpr}
  .amdhsa_next_free_sgpr {nsgpr}
  .amdhsa_accum_offset {accum}
  .amdhsa_group_segment_fixed_size 0
  .amdhsa_kernarg_size 144
  .amdhsa_user_sgpr_count 2
  .amdhsa_user_sgpr_kernarg_segment_ptr 1
  .amdhsa_system_sgpr_workgroup_id_x 1
.end_amdhsa_kernel
"""
DPPM = 'row_mask:0xf bank_mask:0xf'
def cmul(A, d, x, y):
    A(f'v_pk_mul_f32 {v(d,2)}, {v(x,2)}, {v(y,2)} op_sel:[0,0] op_sel_hi:[1,0]')
    A(f'v_pk_fma_f32 {v(d,2)}, {v(x,2)}, {v(y,2)}, {v(d,2)} op_sel:[1,1,0] op_sel_hi:[0,1,1] neg_lo:[1,0,0]')

import os
DIAG = bool(int(os.environ.get('DIAG', '0')))
WS_DIAG = 0x40000
def stamp(A, reg, k):
    if not DIAG: return
    A('s_memrealtime s[98:99]')
    A('s_memtime s[100:101]')
    A('s_waitcnt lgkmcnt(0)')
    A(f'v_writelane_b32 v{reg}, s98, {k}')
    A(f'v_writelane_b32 v{reg}, s100, {k+16}')
def stamp_flush(A, reg, kern, tmp):
    if not DIAG: return
    A('s_waitcnt vmcnt(0)')
    stamp(A, reg, 15)
    A('s_lshl_b32 s98, s2, 9')
    A('s_lshl_b32 s99, s3, 7')
    A('s_add_u32 s98, s98, s99')
    A(f's_add_u32 s98, s98, {WS_DIAG + kern*131072:#x}')
    A(f'v_lshlrev_b32 v{tmp}, 2, v1')
    A('s_mov_b32 exec_lo, -1'); A('s_mov_b32 exec_hi, 0')
    A(f'buffer_store_dword v{reg}, v{tmp}, {s(SRD_WS,4)}, s98 offen')
    dw = int(os.environ.get('DBGWG', '-1'))
    if dw >= 0:
        A('s_lshl_b32 s98, s2, 2')
        A('s_add_u32 s98, s98, s3')
        A(f's_cmp_lg_u32 s98, {dw*4}')
        A('s_cbranch_scc1 L_dbg_skip')
        A(f'v_readlane_b32 s98, v{reg}, 0')
        A(f'v_subrev_u32 v{reg}, s98, v{reg}')
        A('s_mov_b64 exec, 0xffff')
        A(f'global_store_dword v{tmp}, v{reg}, {s(P_DBG,2)}')
        A.label('L_dbg_skip')
```

```python
import sys, struct
sys.path.insert(0, 'gen')
from common import *
from jobs1 import finish_stats
from gemm import Tracker

def f32hex(x): return '0x%08x' % struct.unpack('<I', struct.pack('<f', x))[0]
OPT = lambda k, d: int(os.environ.get(k, d))

W_ST1 = 0x1000
W_ST2 = 0x5000
W_MOD2 = 0x9000
W_FLAGS = 0x10000
W_MODG = 0x20000
W_W2F = 0x100000
W_X1P = 0x400000
W_X1S = 0x600000
W_W1F = 0x1300000
W_XT = 0x800000
W_HHP = 0xC00000
W_END = W_W1F + 224 * 16384
F_REP, F_X1, F_HH, F_RP1 = 0, 16, 32, 48
SPIN = 0x20000

PITCH = 544
L_KC = 0; KCCH = 2112
L_RT = L_KC + 2 * KCCH; RTCH = 8320; R1OFF = 4160
L_UT = L_RT + 2 * RTCH; UTCH = 4608
L_XT = L_UT + 2 * UTCH
L_RED = 0
L_G = 40960
L_WV = L_G; WVCH = 53 * PITCH; VROW = 21
L_CB = L_G + 114688
L_VV = L_CB + 2048
L_S1 = L_VV + 1024; L_S2 = L_S1 + 256; L_S3 = L_S2 + 1024
L_END = L_S3 + 256
L_G2 = L_G
assert L_XT + 8192 <= L_G and L_END <= 163840

S_SPIN = 12; S_J3 = 13
S_TAG = 72; S_PAIR = 75
S_RB, S_CBK, S_ROT, S_ROW4 = 76, 77, 78, 79
S_R64, S_NB, S_K0 = 89, 90, 91
S_SA, S_CA, S_GA, S_CB1 = 80, 82, 84, 86
SRD_WG, SRD_WU = SRD_X, SRD_WMOD
T_X, T_L = 16, 32
T_W, T_H = 16, 32

V_PAR = 8; V_DT = 15
V_Q = 16
V_DK = 48; V_DIAG = 49
V_EA = 50
V_T = 60
V_A = 64; V_ACC = 96; V_B = 128
V_MG = 2
V_DKF = 6
V_J3 = 224
P_AD, P_AW, P_AV, P_WA, P_WB, P_WC = 236, 237, 238, 239, 240, 241
P_AA = 242; P_BA = 246; P_RW = 247; P_RR = 248; P_HA = 249; P_XA = 250; P_L16 = 251; P_T16 = 252; P_UW = 253; P_DM = 254; P_FL = 255
P_XW = 232; P_M2 = 233

STAMPS = os.environ.get('STAMPS', '0,1,2,3,4,5,6,7,8,9,10,11,12,13,14').split(',')
def st(A, k):
    k = str(k)
    if k in STAMPS: stamp(A, V_DIAG, STAMPS.index(k))
def spin_check(A, lab_ok):
    A(f's_sub_u32 s{S_SPIN}, s{S_SPIN}, 1')
    A(f's_cbranch_scc1 {lab_ok}')
def all_tag(A, regs, T):
    A(f'v_min3_u32 v{T}, v{regs[0]}, v{regs[1]}, s{S_TAG}')
    A(f'v_max3_u32 v{T+1}, v{regs[0]}, v{regs[1]}, s{S_TAG}')
    for i in range(2, len(regs), 2):
        r1 = regs[i+1] if i + 1 < len(regs) else regs[i]
        A(f'v_min3_u32 v{T}, v{regs[i]}, v{r1}, v{T}')
        A(f'v_max3_u32 v{T+1}, v{regs[i]}, v{r1}, v{T+1}')
    A(f'v_cmp_ne_u32 vcc, v{T}, v{T+1}')
def checked(A, lab, regs, T, reload):
    A.label(lab + '_chk')
    all_tag(A, regs, T)
    A(f's_cbranch_vccz {lab}_ok')
    spin_check(A, lab + '_ok')
    for t in reload: A(t)
    A('s_waitcnt vmcnt(0)')
    A(f's_branch {lab}_chk')
    A.label(lab + '_ok')

J2D, J2C, J2T = 128, 144, 148
def j2_issue(A):
    A('s_cmp_ge_u32 s2, 192')
    A('s_cbranch_scc1 L_j2i_done')
    A('s_mul_hi_u32 s8, s2, 0x5555556')
    A('s_mul_i32 s9, s8, 48')
    A('s_sub_u32 s9, s2, s9')
    t = V_T
    A(f'v_lshrrev_b32 v{t}, 3, v0')
    A('s_lshl_b32 s4, s8, 8')
    A(f'v_lshl_add_u32 v{t+1}, v{t}, 1, s4')
    A(f'v_mul_u32_u24 v{t}, 6144, v{t}')
    A(f'v_and_b32 v{t+2}, 7, v0')
    A(f'v_lshl_add_u32 v{t}, v{t+2}, 4, v{t}')
    A(f's_mul_i32 s4, s8, {128*6144}')
    A('s_lshl_b32 s5, s9, 7')
    A('s_add_u32 s4, s4, s5')
    for k in range(4):
        A(f'buffer_load_dwordx4 {v(J2D+4*k,4)}, v{t}, {s(SRD_WMOD,4)}, s4 offen nt')
        if k < 3: A(f's_add_u32 s4, s4, {32*6144}')
    for k in range(4): A(f'v_mov_b32 v{J2C+k}, 0')
    for k in range(4): A(f'global_load_short_d16_hi v{J2C+k}, v{t+1}, {s(P_C,2)} offset:{64*k}')
    A(f's_mul_i32 s10, s8, 24576')
    A('s_lshl_b32 s5, s9, 9')
    A('s_add_u32 s10, s10, s5')
    A(f's_add_u32 s10, s10, {W_MODG:#x}')
    A.label('L_j2i_done')

def j1_issue(A, VM):
    T = V_T
    A(f'v_and_b32 v{T}, 3, v1')
    A(f'v_lshlrev_b32 v{T}, 11, v{T}')
    A(f'v_and_b32 v{T+1}, 60, v1')
    A(f'v_add_u32 v{T}, v{T}, v{T+1}')
    A('s_lshl_b32 s4, s2, 13')
    A('s_lshl_b32 s5, s3, 8')
    A('s_add_u32 s4, s4, s5')
    for k in range(4):
        for r in range(2):
            VM.issue(f'buffer_load_dword v{V_Q+4*k+2*r}, v{T}, {s(SRD_X,4)}, s4 offen offset:{64*k+1024*r} nt', 'j1')

def params_issue(A, VM):
    for k in range(7): A(f'v_mov_b32 v{V_PAR+k}, 0')
    A(f's_lshl_b32 s4, s{S_PAIR}, 9')
    A(f'v_lshl_add_u32 v{V_T+2}, v0, 1, s4')
    for k, p in enumerate((P_ARE, P_AIM, P_BRE, P_BIM, P_CRE, P_CIM)):
        VM.issue(f'global_load_short_d16_hi v{V_PAR+k}, v{V_T+2}, {s(p,2)} nt')
    A(f's_lshl_b32 s4, s{S_PAIR}, 2')
    A(f'v_lshrrev_b32 v{V_T+3}, 7, v0')
    A(f'v_lshl_add_u32 v{V_T+3}, v{V_T+3}, 1, s4')
    VM.issue(f'global_load_short_d16_hi v{V_PAR+6}, v{V_T+3}, {s(P_LDT,2)}')
    A(f'v_mov_b32 v{V_T+3}, s4')
    VM.issue(f'global_load_dword v{V_DK}, v{V_T+3}, {s(P_DSK,2)}', 'par')

U1 = V_A + 8
def j1_part(A, VM):
    S = V_A
    A('s_lshl_b32 s4, s3, 20')
    A('s_lshl_b32 s5, s2, 6')
    A('s_add_u32 s4, s4, s5')
    A(f's_add_u32 s4, s4, {W_XT:#x}')
    for k in range(4):
        VM.issue(f'buffer_store_dwordx4 {v(V_Q+4*k,4)}, v{U1+2}, {s(SRD_WS,4)}, s4 offen sc1')
        if k < 3: A('s_add_u32 s4, s4, 0x40000')
    A('s_mov_b32 s6, 0x3f803f80')
    for k in range(4):
        for r in range(2):
            x = V_Q + 4*k + 2*r
            A(f'v_dot2_f32_bf16 v{S+2*r}, v{x}, s6, {"0" if k == 0 else v(S+2*r)}')
            A(f'v_dot2_f32_bf16 v{S+2*r+1}, v{x}, v{x}, {"0" if k == 0 else v(S+2*r+1)}')
    A(f'v_permlane32_swap_b32 v{S}, v{S+1}')
    A(f'v_permlane32_swap_b32 v{S+2}, v{S+3}')
    A(f'v_add_f32 v{S}, v{S}, v{S+1}')
    A(f'v_add_f32 v{S+2}, v{S+2}, v{S+3}')
    A(f'v_permlane16_swap_b32 v{S}, v{S+2}')
    A(f'v_add_f32 v{S}, v{S}, v{S+2}')
    A(f'v_add_f32_dpp v{S}, v{S}, v{S} row_ror:8 {DPPM}')
    A(f'v_add_f32_dpp v{S}, v{S}, v{S} row_ror:4 {DPPM}')
    A(f'ds_write_b32 v{U1}, v{S}')

def j2_part(A):
    A('s_cmp_ge_u32 s2, 192')
    A('s_cbranch_scc1 L_j2p_done')
    D, C, ACC_ = J2D, J2C, J2T; U = J2T + 8; X = 160
    for k in range(4): A(f'v_mul_f32 v{U+k}, 0xbfb8aa3b, v{C+k}')
    for k in range(4): A(f'v_exp_f32 v{U+k}, v{U+k}')
    for k in range(4): A(f'v_add_f32 v{U+k}, 1.0, v{U+k}')
    for k in range(4): A(f'v_rcp_f32 v{U+k}, v{U+k}')
    for k in range(4):
        for j in range(4):
            A(f'v_lshlrev_b32 v{X+8*k+2*j}, 16, v{D+4*k+j}')
            A(f'v_and_b32 v{X+8*k+2*j+1}, 0xffff0000, v{D+4*k+j}')
        if k == 0:
            for kk in range(4): A(f'v_mul_f32 v{C+kk}, v{C+kk}, v{U+kk}')
        if k == 1:
            for kk in range(0, 4, 2): A(f'v_cvt_pk_bf16_f32 v{U+kk}, v{C+kk}, v{C+kk+1}')
        if k == 2:
            for kk in range(0, 4, 2):
                A(f'v_lshlrev_b32 v{C+kk}, 16, v{U+kk}')
                A(f'v_and_b32 v{C+kk+1}, 0xffff0000, v{U+kk}')
    for k in range(4):
        hi = k & 1; cp = C + (k & ~1)
        for j in range(4):
            if k == 0: A(f'v_pk_mul_f32 {v(ACC_+2*j,2)}, {v(X+2*j,2)}, {v(cp,2)} op_sel:[0,{hi}] op_sel_hi:[1,{hi}]')
            else: A(f'v_pk_fma_f32 {v(ACC_+2*j,2)}, {v(X+8*k+2*j,2)}, {v(cp,2)}, {v(ACC_+2*j,2)} op_sel:[0,{hi},0] op_sel_hi:[1,{hi},1]')
    for j in range(4): A(f'v_permlane32_swap_b32 v{ACC_+j}, v{ACC_+j+4}')
    for j in range(4): A(f'v_add_f32 v{ACC_+j}, v{ACC_+j}, v{ACC_+j+4}')
    for j in range(2): A(f'v_permlane16_swap_b32 v{ACC_+j}, v{ACC_+j+2}')
    for j in range(2): A(f'v_add_f32 v{ACC_+j}, v{ACC_+j}, v{ACC_+j+2}')
    for j in range(2): A(f'v_add_f32_dpp v{ACC_+j}, v{ACC_+j}, v{ACC_+j} row_ror:8 {DPPM}')
    A(f'ds_write_b64 v{U1+3}, {v(ACC_,2)}')
    A.label('L_j2p_done')

def j12_final(A):
    S = V_A
    A('s_cmp_lg_u32 s3, 0')
    A('s_cbranch_scc1 L_j1f_done')
    for w in range(4): A(f'ds_read2_b32 {v(S+2*w,2)}, v{U1+1} offset0:{16*w} offset1:{16*w+8}')
    A('s_lshl_b32 s4, s2, 6')
    A(f's_add_u32 s4, s4, {W_ST1:#x}')
    A(f'v_lshlrev_b32 v{V_T}, 3, v1')
    A('s_waitcnt lgkmcnt(0)')
    A(f'v_pk_add_f32 {v(S,2)}, {v(S,2)}, {v(S+2,2)}')
    A(f'v_pk_add_f32 {v(S+4,2)}, {v(S+4,2)}, {v(S+6,2)}')
    A(f'v_pk_add_f32 {v(S,2)}, {v(S,2)}, {v(S+4,2)}')
    finish_stats(A, S, S+1, S+2)
    A(f'v_mov_b32 v{S+3}, s{S_TAG}')
    A('s_mov_b64 exec, 0xff')
    A(f'buffer_store_dwordx2 {v(S+2,2)}, v{V_T}, {s(SRD_WS,4)}, s4 offen sc1')
    A('s_mov_b64 exec, -1')
    A.label('L_j1f_done')
    A('s_cmp_lg_u32 s3, 1')
    A('s_cbranch_scc1 L_j2f_done')
    A('s_cmp_ge_u32 s2, 192')
    A('s_cbranch_scc1 L_j2f_done')
    A(f'ds_read2st64_b32 {v(S,2)}, v{U1+4} offset0:0 offset1:1')
    A(f'ds_read2st64_b32 {v(S+2,2)}, v{U1+4} offset0:2 offset1:3')
    A(f'v_lshlrev_b32 v{V_T}, 3, v1')
    A('s_waitcnt lgkmcnt(0)')
    A(f'v_pk_add_f32 {v(S,2)}, {v(S,2)}, {v(S+2,2)}')
    A(f'v_add_f32 v{S}, v{S}, v{S+1}')
    A(f'v_mov_b32 v{S+1}, s{S_TAG}')
    A(f'buffer_store_dwordx2 {v(S,2)}, v{V_T}, {s(SRD_WS,4)}, s10 offen sc1')
    A.label('L_j2f_done')
    A('s_nop 1')

def r1_addr(A):
    I, Q, X = V_A, V_A + 1, V_A + 2
    A(f'v_and_b32 v{I}, 15, v1')
    A(f'v_lshrrev_b32 v{Q}, 4, v1')
    A(f'v_lshrrev_b32 v{X}, 2, v{I}')
    A(f'v_and_b32 v{X+1}, 1, v{I}')
    A(f'v_lshl_add_u32 v{X}, v{X}, 1, v{X+1}')
    A(f'v_lshlrev_b32 v{X}, 4, v{X}')
    A(f'v_mul_u32_u24 v{X+1}, {8*3584}, v{Q}')
    A('s_lshl_b32 s4, s2, 2')
    A('s_add_u32 s4, s4, s3')
    A('s_sub_u32 s5, s4, 896')
    A('s_cmp_ge_u32 s4, 896')
    A(f's_cselect_b32 s{S_J3}, s5, s4')
    A(f's_lshr_b32 s4, s{S_J3}, 5')
    A(f's_bfe_u32 s5, s{S_J3}, 0x40001')
    A(f's_and_b32 s6, s{S_J3}, 1')
    A('s_lshl_b32 s73, s4, 3')
    A('s_lshl_b32 s7, s6, 2')
    A('s_add_u32 s73, s73, s7')
    A('s_lshl_b32 s73, s73, 4')
    A('s_add_u32 s73, s73, s5')
    A('s_lshl_b32 s73, s73, 10')
    A(f's_add_u32 s73, s73, {W_W1F:#x}')
    A('s_lshl_b32 s4, s4, 7')
    A(f's_mul_i32 s5, s5, {32*3584}')
    A('s_lshl_b32 s6, s6, 3')
    A('s_add_u32 s4, s4, s5')
    A('s_add_u32 s4, s4, s6')
    A('s_add_u32 s4, s4, 3584')
    A(f'v_add3_u32 v{X}, v{X}, v{X+1}, s4')
    A(f'v_and_b32 v{X+1}, 2, v{I}')
    A(f'v_cmp_eq_u32 vcc, 0, v{X+1}')
    A(f'v_mov_b32 v234, s{P_WU}')
    A(f'v_mov_b32 v235, s{P_WU+1}')
    A(f'v_mov_b32 v{X+1}, s{P_WG}')
    A(f'v_mov_b32 v{X+2}, s{P_WG+1}')
    A(f'v_cndmask_b32 v234, v234, v{X+1}, vcc')
    A(f'v_cndmask_b32 v235, v235, v{X+2}, vcc')
    A(f'v_add_co_u32 v234, vcc, v234, v{X}')
    A('v_addc_co_u32 v235, vcc, 0, v235, vcc')

def precompute(A):
    T = 192
    for k in range(4): A(f'v_mov_b32 v{T+k}, 0')
    A(f'v_lshlrev_b32 v{P_L16}, 4, v1')
    A(f'v_lshlrev_b32 v{P_T16}, 4, v0')
    A('s_mov_b64 exec, 0x3fffffff')
    A(f'ds_write_b128 v{P_L16}, {v(T,4)} offset:{L_UT}')
    A(f'ds_write_b128 v{P_L16}, {v(T,4)} offset:{L_UT+UTCH}')
    A('s_mov_b64 exec, 3')
    for ch in range(2):
        A(f'ds_write_b128 v{P_L16}, {v(T,4)} offset:{L_RT+ch*RTCH+4096}')
        A(f'ds_write_b128 v{P_L16}, {v(T,4)} offset:{L_RT+ch*RTCH+R1OFF+4096}')
        A(f'ds_write_b128 v{P_L16}, {v(T,4)} offset:{L_KC+ch*KCCH+2048}')
    A('s_mov_b64 exec, -1')
    I, Q = T, T + 1
    X = T + 3
    A(f'v_and_b32 v{I}, 15, v1')
    A(f'v_lshrrev_b32 v{Q}, 4, v1')
    A(f'v_and_b32 v{X}, 3, v1')
    A(f'v_lshrrev_b32 v{X+1}, 2, v1')
    A(f'v_lshlrev_b32 v{X+1}, 14, v{X+1}')
    A(f'v_lshl_add_u32 v{U1+2}, v{X}, 4, v{X+1}')
    A(f'v_lshlrev_b32 v{X}, 3, v{X}')
    A(f'v_and_b32 v{X+1}, 1, v{Q}')
    A(f'v_lshl_add_u32 v{X}, v{X+1}, 2, v{X}')
    A(f'v_and_b32 v{X+1}, 32, v1')
    A('s_lshl_b32 s4, s3, 6')
    A(f's_add_u32 s4, s4, {L_S1}')
    A(f'v_add3_u32 v{U1}, v{X}, v{X+1}, s4')
    A(f'v_and_b32 v{X}, 7, v1')
    A(f'v_lshlrev_b32 v{U1+1}, 2, v{X}')
    A(f'v_add_u32 v{U1+1}, {L_S1}, v{U1+1}')
    A(f'v_lshlrev_b32 v{X}, 5, v{X}')
    A(f'v_lshl_add_u32 v{X}, v{Q}, 3, v{X}')
    A('s_lshl_b32 s4, s3, 8')
    A(f's_add_u32 s4, s4, {L_S2}')
    A(f'v_add_u32 v{U1+3}, s4, v{X}')
    A(f'v_lshlrev_b32 v{U1+4}, 2, v1')
    A(f'v_add_u32 v{U1+4}, {L_S2}, v{U1+4}')
    A(f'v_lshrrev_b32 v{X}, 3, v1')
    A(f'v_min_u32 v{X}, 5, v{X}')
    A(f'v_lshlrev_b32 v5, 12, v{X}')
    A(f'v_and_b32 v{X+1}, 3, v1')
    A(f'v_mul_u32_u24 v{X+1}, 24576, v{X+1}')
    A(f'v_and_b32 v{X+2}, 4, v1')
    A(f'v_lshl_add_u32 v{X+1}, v{X+2}, 1, v{X+1}')
    A(f'v_add_u32 v5, v5, v{X+1}')
    A(f'v_cmp_eq_u32 vcc, 1, v{X}')
    A(f'v_cmp_eq_u32 s[6:7], 4, v{X}')
    A('s_or_b64 vcc, vcc, s[6:7]')
    A(f'v_subrev_u32 v{P_M2}, 3, v{X}')
    A(f'v_lshlrev_b32 v{P_M2}, 11, v{P_M2}')
    A('v_cndmask_b32 v4, 0, 1.0, vcc')
    L0 = T + 4; F = T + 6; PK = T + 16; LL = T + 22
    A(f'v_lshlrev_b32 v{L0}, 3, v0')
    A(f'v_sub_u32 v{L0}, 2047, v{L0}')
    A(f'v_cvt_f32_i32 v{F}, v{L0}')
    for e in range(1, 10): A(f'v_add_f32 v{F+e}, {f32hex(-float(e))}, v{F}')
    for e in range(0, 10, 2): A(f'v_cvt_pk_bf16_f32 v{PK+e//2}, v{F+e}, v{F+e+1}')
    A(f's_movk_i32 s4, {128+0x4280:#x}')
    A(f's_mov_b32 s5, {(L_KC - 2*0x4280) & 0xffffffff:#x}')
    for e in range(9):
        if e & 1: A(f'v_lshrrev_b32 v{V_EA+e}, 16, v{PK+e//2}')
        else: A(f'v_and_b32 v{V_EA+e}, 0xffff, v{PK+e//2}')
        A(f'v_add_u32 v{LL+(e&1)}, {0x4280-e:#x}, v{L0}')
        A(f'v_med3_i32 v{V_EA+e}, v{V_EA+e}, v{LL+(e&1)}, s4')
        A(f'v_lshl_add_u32 v{V_EA+e}, v{V_EA+e}, 1, s5')
    A(f'v_mov_b32 v{LL}, {L_KC+2048}')
    A('v_cmp_eq_u32 vcc, 0xff, v0')
    A(f'v_lshrrev_b32 v{P_AD}, 7, v0')
    A(f'v_mul_u32_u24 v{P_AD}, {WVCH}, v{P_AD}')
    A(f'v_cndmask_b32 v{V_EA+8}, v{V_EA+8}, v{LL}, vcc')
    A(f'v_and_b32 v{X}, 127, v0')
    A(f'v_lshl_add_u32 v{P_AD}, v{X}, 2, v{P_AD}')
    A(f'v_add_u32 v{P_AD}, {L_WV}, v{P_AD}')
    A(f'v_mul_u32_u24 v{P_AW}, {PITCH}, v{I}')
    A(f'v_lshl_add_u32 v{P_AW}, v{Q}, 4, v{P_AW}')
    A('s_lshr_b32 s14, s3, 1')
    A('s_and_b32 s15, s3, 1')
    A(f's_mul_i32 s4, s14, {WVCH}')
    A(f's_add_u32 s4, s4, {L_WV}')
    A(f'v_add_u32 v{P_AW}, s4, v{P_AW}')
    A(f's_mul_i32 s5, s15, {16*PITCH}')
    A(f'v_add_u32 v{P_AV}, s5, v{P_AW}')
    AQ = T + 2
    A('s_lshl_b32 s5, s15, 4')
    A(f'v_add_u32 v{AQ}, s5, v{I}')
    A(f's_mul_i32 s4, s14, {KCCH}')
    A(f'v_lshlrev_b32 v{P_WA}, 4, v{AQ}')
    A(f'v_add_u32 v{X}, 8, v{P_WA}')
    A(f'v_cmp_eq_u32 vcc, 1, v{Q}')
    A(f'v_lshlrev_b32 v{X+1}, 3, v{AQ}')
    A(f'v_add_u32 v{X+1}, 512, v{X+1}')
    A(f'v_cndmask_b32 v{P_WA}, v{P_WA}, v{X}, vcc')
    A(f'v_cmp_eq_u32 vcc, 2, v{Q}')
    A(f'v_lshlrev_b32 v{X}, 2, v{AQ}')
    A(f'v_add_u32 v{X}, 768, v{X}')
    A(f'v_cndmask_b32 v{P_WA}, v{P_WA}, v{X+1}, vcc')
    A(f'v_cmp_eq_u32 vcc, 3, v{Q}')
    A(f'v_mov_b32 v{X+1}, 4')
    A(f'v_mov_b32 v{X+2}, 128')
    A(f'v_cndmask_b32 v{P_WA}, v{P_WA}, v{X}, vcc')
    A(f'v_cndmask_b32 v{X+1}, v{X+1}, v{X+2}, vcc')
    A(f'v_add_u32 v{P_WA}, s4, v{P_WA}')
    A(f'v_add_u32 v{P_WB}, v{P_WA}, v{X+1}')
    A(f'v_lshlrev_b32 v{P_WC}, 8, v{Q}')
    A(f'v_lshl_add_u32 v{P_WC}, v{AQ}, 1, v{P_WC}')
    A(f'v_add_u32 v{P_WC}, s4, v{P_WC}')
    A(f'v_lshlrev_b32 v{X}, 3, v{Q}')
    A(f'v_sub_u32 v{X}, v{X}, v{I}')
    A(f'v_add_u32 v{X}, 2031, v{X}')
    A(f'v_and_b32 v{X+1}, 1, v{X}')
    A(f'v_mul_u32_u24 v{X+1}, {R1OFF}, v{X+1}')
    A(f'v_lshrrev_b32 v{X}, 1, v{X}')
    A(f'v_lshl_add_u32 v{X}, v{X}, 2, v{X+1}')
    A(f's_mul_i32 s5, s14, {RTCH}')
    A('s_lshl_b32 s6, s15, 6')
    A('s_sub_u32 s5, s5, s6')
    A(f's_add_u32 s5, s5, {L_RT - 128*7}')
    for g in range(4):
        A(f'v_add_u32 v{P_AA+g}, s5, v{X}')
        if g < 3: A('s_sub_u32 s5, s5, 1024')
    A(f's_mul_i32 s5, s14, {UTCH}')
    A('s_sub_u32 s5, s5, s6')
    A(f's_add_u32 s5, s5, {L_UT + 64}')
    A(f'v_lshlrev_b32 v{P_BA}, 5, v{I}')
    A(f'v_lshl_add_u32 v{P_BA}, v{Q}, 4, v{P_BA}')
    A(f'v_add_u32 v{P_BA}, s5, v{P_BA}')
    A(f'v_mul_u32_u24 v{X}, 320, v{Q}')
    A(f'v_lshl_add_u32 v{P_RW}, v{I}, 4, v{X}')
    A(f's_mul_i32 s4, s3, {8*1280}')
    A(f'v_add_u32 v{P_RW}, s4, v{P_RW}')
    A(f'v_and_b32 v{X}, 3, v1')
    A(f'v_mul_u32_u24 v{X}, 320, v{X}')
    A(f'v_lshrrev_b32 v{X+1}, 2, v1')
    A(f'v_lshl_add_u32 v{P_RR}, v{X+1}, 4, v{X}')
    A(f's_mul_i32 s4, s3, {2*1280}')
    A(f'v_add_u32 v{P_RR}, s4, v{P_RR}')
    A('s_lshl_b32 s4, s3, 10')
    A(f'v_lshl_add_u32 v{P_HA}, v1, 3, s4')
    A(f'v_lshlrev_b32 v{P_XA}, 1, v{P_HA}')
    A(f'v_lshl_add_u32 v{P_UW}, v1, 2, s4')
    A(f'v_lshlrev_b32 v{P_XW}, 1, v{P_UW}')
    A(f'v_lshlrev_b32 v{P_FL}, 7, v1')
    assert L_KC == 0 and L_RED == 0

J1D = V_ACC
def r1_issue(A, VM):
    A(f's_mov_b32 s4, {3*3584}')
    A('s_mov_b32 s5, 0')
    for e in range(8):
        VM.issue(f'global_load_dwordx2 {v(J1D+2*e,2)}, v[234:235], off offset:{(e % 3 - 1) * 3584} nt', 'r1')
        if e % 3 == 2: A('v_lshl_add_u64 v[234:235], v[234:235], 0, s[4:5]')

def r1_process(A, VM):
    A('s_mov_b32 s6, 0x05040100')
    A('s_mov_b32 s7, 0x07060302')
    for c in range(4):
        o = (V_T, 92)[c & 1]
        for j in range(4): A(f'v_perm_b32 v{o+j}, v{J1D+2*(2*j+1)+c//2}, v{J1D+2*(2*j)+c//2}, s{6+(c&1)}')
        VM.issue(f'buffer_store_dwordx4 {v(o,4)}, v{P_L16}, {s(SRD_WS,4)}, s73 offen sc1', 'r1st')
        if c < 3: A('s_add_u32 s73, s73, 0x4000')

RP1 = V_J3
def rp1_text(): return [f'buffer_load_dwordx4 {v(RP1,4)}, v{P_DM}, {s(SRD_WS,4)}, s74 offen sc1']
def rp1_load(A, VM):
    A(f's_mul_i32 s74, s{S_CBK}, 7')
    A('s_and_b32 s74, s74, 0xf8')
    A(f'v_and_b32 v{P_DM}, 15, v1')
    A(f'v_add_u32 v{P_DM}, s74, v{P_DM}')
    A(f'v_min_u32 v{P_DM}, 0xdf, v{P_DM}')
    A(f'v_lshlrev_b32 v{P_DM}, 7, v{P_DM}')
    A(f's_mov_b32 s74, {W_FLAGS + F_RP1:#x}')
    VM.issue(rp1_text()[0], 'rp1')

def w1_dma_ops():
    ops = []
    for k in range(28):
        def f(A, VM, k=k):
            if k == 0:
                A(f's_mul_i32 s4, s{S_CBK}, {7*16384}')
                A(f's_add_u32 s4, s4, {W_W1F - L_G:#x}')
                A(f'v_add_u32 v{V_T+1}, s4, v{P_L16}')
                A(f's_mul_i32 s5, s3, {28*1024}')
                A(f's_add_u32 m0, s5, {L_G}')
            elif k % 4 == 0:
                A('s_add_u32 m0, m0, 0x1000')
            VM.issue(f'buffer_load_dwordx4 v{V_T+1}, {s(SRD_WS,4)}, m0 offen offset:{1024*(k%4)} sc1 lds', 'dma')
        ops.append(f)
    return ops

def tlb_touch(A, VM):
    A(f'v_min_u32 v58, {(W_END >> 21)}, v1')
    A('v_lshlrev_b32 v58, 21, v58')
    VM.issue(f'buffer_load_dword v59, v58, {s(SRD_WS,4)}, 0 offen offset:64')
    VM.issue(f'buffer_load_dword v59, off, {s(SRD_OUT,4)}, 0')
    VM.issue(f'buffer_load_dword v59, off, {s(SRD_WD,4)}, 0')

def kgen_valu(A, VM, hooks):
    ARE, AIM, BRE, BIM, CRE, CIM, LDT = [V_PAR + k for k in range(7)]
    AL, BE = V_T, V_T + 1
    A(f'v_mul_f32 v{V_DT}, 0x3fb8aa3b, v{LDT}')
    A(f'v_exp_f32 v{V_DT}, v{V_DT}')
    W = V_B - 12; Vv = W + 42
    assert Vv + 63 <= 223
    Z1, Z2, Z4, Z256, Z512, Z1024 = V_A, V_A + 2, V_A + 4, V_A + 6, V_A + 8, V_A + 10
    E = V_A + 12; PKT = V_A + 20
    A(f'v_pk_mul_f32 {v(W,2)}, {v(CRE,2)}, {v(BRE,2)} op_sel:[0,0] op_sel_hi:[1,0]')
    A(f'v_cvt_pk_bf16_f32 v{V_DT}, v{V_DT}, v{V_DT}')
    A(f'v_pk_fma_f32 {v(W,2)}, {v(CRE,2)}, {v(BRE,2)}, {v(W,2)} op_sel:[1,1,0] op_sel_hi:[0,1,1] neg_lo:[1,0,0]')
    A(f'v_lshlrev_b32 v{V_DT}, 16, v{V_DT}')
    A(f'v_mul_f32 v{AL}, v{V_DT}, v{ARE}')
    A(f'v_mul_f32 v{BE}, v{V_DT}, v{AIM}')
    A(f'v_mul_f32 v{AL}, 0x3fb8aa3b, v{AL}')
    A(f'v_mul_f32 v{BE}, 0.15915494, v{BE}')
    tgt = [(Vv + 2, 8.0), (Z1, 1.0), (Z256, 256.0)]
    for i, (d, o) in enumerate(tgt):
        if o != 1.0:
            A(f'v_mul_f32 v{E+i}, {f32hex(o)}, v{AL}')
            A(f'v_mul_f32 v{E+3+i}, {f32hex(o)}, v{BE}')
    for i, (d, o) in enumerate(tgt):
        A(f'v_fract_f32 v{E+3+i}, v{BE if o == 1.0 else E+3+i}')
        A(f'v_exp_f32 v{E+i}, v{AL if o == 1.0 else E+i}')
    for i, (d, o) in enumerate(tgt):
        A(f'v_cos_f32 v{d}, v{E+3+i}')
        A(f'v_sin_f32 v{d+1}, v{E+3+i}')
    for i, (d, o) in enumerate(tgt):
        ep = (E + i) & ~1; hi = (E + i) & 1
        A(f'v_pk_mul_f32 {v(d,2)}, {v(d,2)}, {v(ep,2)} op_sel:[0,{hi}] op_sel_hi:[1,{hi}]')
    cnt = [0]
    def row_out(row, reg, conj):
        t = PKT + (cnt[0] % 8); cnt[0] += 1
        return [f'v_cvt_pk_bf16_f32 v{t}, v{reg}, {"-" if conj else ""}v{reg+1}', f'ds_write_b32 v{P_AD}, v{t} offset:{row*PITCH}']
    w = lambda r: W + 2*r
    vv = lambda r: Vv + 2*r
    R = VROW
    G = []
    G.append([(vv(2), vv(1), vv(1), R+2, 1), (Z2, Z1, Z1, None, 0), (Z512, Z256, Z256, None, 0), (w(1), w(0), Z1, 1, 0), (w(8), w(0), Z256, 8, 0)])
    G.append([(vv(4), vv(2), vv(2), R+4, 1), (Z4, Z2, Z2, None, 0), (Z1024, Z512, Z512, None, 0), (vv(3), vv(2), vv(1), R+3, 1), (w(2), w(0), Z2, 2, 0), (w(3), w(1), Z2, 3, 0), (w(12), w(0), Z512, 12, 0), (w(14), w(8), Z512, 14, 0)])
    G.append([(vv(8), vv(4), vv(4), R+8, 1)] + [(w(4+i), w(i), Z4, 4+i, 0) for i in range(4)] + [(vv(4+i), vv(4), vv(i), R+4+i, 1) for i in range(1, 4)])
    G.append([(w(9), w(2), Z256, 9, 0), (w(16), w(0), Z1024, 16, 0), (w(17), w(8), Z1024, 17, 0), (w(18), w(12), Z1024, 18, 0), (w(19), w(14), Z1024, 19, 0), (vv(16), vv(8), vv(8), R+16, 1)])
    G.append([(w(10), w(4), Z256, 10, 0), (w(11), w(6), Z256, 11, 0), (w(13), w(4), Z512, 13, 0)] + [(vv(8+i), vv(8), vv(i), R+8+i, 1) for i in range(1, 8)])
    G.append([(w(15), w(10), Z512, 15, 0), (w(20), w(16), Z1024, 20, 0)] + [(vv(16+i), vv(16), vv(i), R+16+i, 1) for i in range(1, 16)])
    A(f'v_mov_b32 v{E}, 0x3f80')
    pend = [f'ds_write_b32 v{P_AD}, v{E} offset:{R*PITCH}'] + row_out(0, w(0), 0) + row_out(R+1, vv(1), 1)
    nrows = 3
    hooks = list(hooks)
    for grp in G:
        for c0 in range(0, len(grp), 3):
            ch = grp[c0:c0+3]
            for (d, x, y, row, cj) in ch: A(f'v_pk_mul_f32 {v(d,2)}, {v(x,2)}, {v(y,2)} op_sel:[0,0] op_sel_hi:[1,0]')
            for (d, x, y, row, cj) in ch: A(f'v_pk_fma_f32 {v(d,2)}, {v(x,2)}, {v(y,2)}, {v(d,2)} op_sel:[1,1,0] op_sel_hi:[0,1,1] neg_lo:[1,0,0]')
            for p in [p for p in pend if p.startswith('v_')] + [p for p in pend if p.startswith('ds_')]: A(p)
            pend = []
            for (d, x, y, row, cj) in ch:
                if row is not None: pend += row_out(row, d, cj); nrows += 1
            if hooks: hooks.pop(0)(A, VM)
    for p in [p for p in pend if p.startswith('v_')] + [p for p in pend if p.startswith('ds_')]: A(p)
    for h in hooks: h(A, VM)
    assert nrows == 53

def kgen_mfma(A):
    F = V_B
    order = []
    for k in range(8):
        order += [(F + 12*k, P_AV, VROW*PITCH + 64*k), (F + 12*k + 4, P_AW, 64*k), (F + 12*k + 8, P_AW, 16*PITCH + 64*k)]
    for i in range(15): A(f'ds_read_b128 {v(order[i][0],4)}, v{order[i][1]} offset:{order[i][2]}')
    nxt = 15
    K = V_A
    for k in range(8):
        A(f's_waitcnt lgkmcnt({nxt - 3*(k+1)})')
        c0 = '0' if k == 0 else v(K,4); c1 = '0' if k == 0 else v(K+4,4)
        A(f'v_mfma_f32_16x16x32_bf16 {v(K,4)}, {v(F+12*k+4,4)}, {v(F+12*k,4)}, {c0}')
        A(f'v_mfma_f32_16x16x32_bf16 {v(K+4,4)}, {v(F+12*k+8,4)}, {v(F+12*k,4)}, {c1}')
        for _ in range(3):
            if nxt < 24:
                A(f'ds_read_b128 {v(order[nxt][0],4)}, v{order[nxt][1]} offset:{order[nxt][2]}'); nxt += 1
    dp = V_DT & ~1; hi = V_DT & 1
    for j in range(4): A(f'v_pk_mul_f32 {v(K+2*j,2)}, {v(K+2*j,2)}, {v(dp,2)} op_sel:[0,{hi}] op_sel_hi:[1,{hi}]')
    for j in range(4): A(f'v_cvt_pk_bf16_f32 v{K+8+j}, v{K+2*j}, v{K+2*j+1}')
    A(f'ds_write_b32 v{P_WA}, v{K+8}')
    A(f'ds_write_b32 v{P_WB}, v{K+9}')
    A(f'ds_write_b16 v{P_WC}, v{K+10} offset:1024')
    A(f'ds_write_b16_d16_hi v{P_WC}, v{K+10} offset:{1024+64}')
    A(f'ds_write_b16 v{P_WC}, v{K+11} offset:{1024+128}')
    A(f'ds_write_b16_d16_hi v{P_WC}, v{K+11} offset:{1024+192}')

def expand(A):
    G = V_B; O = V_B + 32
    for e in range(9): A(f'ds_read_u16 v{G+e}, v{V_EA+e}')
    for e in range(5): A(f'ds_read_u16 v{G+16+e}, v{V_EA+e} offset:{KCCH}')
    A('s_waitcnt lgkmcnt(5)')
    for e in range(5, 9): A(f'ds_read_u16 v{G+16+e}, v{V_EA+e} offset:{KCCH}')
    for ch in range(2):
        g = G + 16*ch; o = O + 8*ch
        for y in range(4):
            A(f'v_lshl_or_b32 v{o+y}, v{g+2*y+1}, 16, v{g+2*y}')
            A(f'v_lshl_or_b32 v{o+4+y}, v{g+2*y+2}, 16, v{g+2*y+1}')
        if ch == 0: A('s_waitcnt lgkmcnt(0)')
        A(f'ds_write_b128 v{P_T16}, {v(o,4)} offset:{L_RT+ch*RTCH}')
        A(f'ds_write_b128 v{P_T16}, {v(o+4,4)} offset:{L_RT+ch*RTCH+R1OFF}')

def sweep_text():
    t = [f'buffer_load_dwordx2 {v(V_MG,2)}, v5, {s(SRD_WS,4)}, s94 offen sc1']
    for k in range(4): t.append(f'buffer_load_dwordx4 {v(V_Q+16+4*k,4)}, v{P_L16}, {s(SRD_WS,4)}, s93 offen offset:{1024*k} sc1')
    for k in range(4): t.append(f'buffer_load_dwordx4 {v(V_Q+4*k,4)}, v{P_L16}, {s(SRD_WS,4)}, s92 offen offset:{1024*k} sc1')
    return t
def sweep_issue(A, VM):
    A(f's_lshl_b32 s92, s{S_PAIR}, 14')
    A('s_lshl_b32 s93, s3, 12')
    A('s_add_u32 s92, s92, s93')
    A(f's_add_u32 s92, s92, {W_XT:#x}')
    A(f's_add_u32 s93, s93, {W_ST1:#x}')
    A(f's_lshl_b32 s94, s{S_PAIR}, 4')
    A(f's_add_u32 s94, s94, {W_MODG:#x}')
    for t in sweep_text(): VM.issue(t, 'sweep')

def hbuild(A, VM):
    M = V_MG
    RS = V_B + 64; X = V_B + 80; H = V_B + 96 - 48; O = V_A + 16
    A(f'v_add_f32_dpp v{M}, v{M}, v{M} quad_perm:[1,0,3,2] {DPPM}')
    for k in range(8): A(f'v_lshlrev_b32 v{RS+2*k}, 16, v{V_Q+16+2*k}')
    A(f'v_add_f32_dpp v{M}, v{M}, v{M} quad_perm:[2,3,0,1] {DPPM}')
    for k in range(4): A(f'v_rcp_f32 v{RS+2*k}, v{RS+2*k}')
    A(f'v_cvt_pk_bf16_f32 v{M}, v{M}, v{M}')
    A(f'v_lshlrev_b32 v{M}, 16, v{M}')
    A(f'v_add_f32 v{M}, v{M}, v4')
    A(f'v_cvt_pk_bf16_f32 v{M+1}, v{M}, v{M}')
    for k in range(4, 8): A(f'v_rcp_f32 v{RS+2*k}, v{RS+2*k}')
    A(f'v_lshlrev_b32 v{M}, 16, v{M+1}')
    for k in range(8):
        A(f'v_and_b32 v{RS+2*k+1}, 0xffff0000, v{V_Q+16+2*k}')
        if k < 4:
            d = (S_SA, S_CA, S_GA, S_CB1)[k]; ln = (0, 8, 16, 32)[k]
            A(f'v_readlane_b32 s{d}, v{M}, {ln}')
            A(f'v_readlane_b32 s{d+1}, v{M}, {ln+4}')
    A(f'v_mov_b32_dpp v4, v{M} row_shl:4 {DPPM}')
    for k in range(8):
        A(f'v_lshlrev_b32 v{X+2*k}, 16, v{V_Q+2*k}')
        A(f'v_and_b32 v{X+2*k+1}, 0xffff0000, v{V_Q+2*k}')
    A(f'v_and_or_b32 v{M}, v{M+1}, s95, v4')
    A(f'v_mov_b32 v{M+1}, s{S_TAG}')
    for k in range(8):
        A(f'v_pk_add_f32 {v(X+2*k,2)}, {v(X+2*k,2)}, {v(RS+2*k,2)} op_sel:[0,1] op_sel_hi:[1,1] neg_lo:[0,1] neg_hi:[0,1]')
        A(f'v_pk_mul_f32 {v(H+2*k,2)}, {s(S_CA,2)}, {v(RS+2*k,2)} op_sel:[0,0] op_sel_hi:[1,0]')
    A(f's_lshl_b32 s4, s{S_PAIR}, 3')
    A(f's_add_u32 s4, s4, {W_MOD2:#x}')
    A('s_mov_b32 exec_lo, 0x1000000')
    A('s_mov_b32 exec_hi, 0x101')
    VM.issue(f'buffer_store_dwordx2 {v(M,2)}, v{P_M2}, {s(SRD_WS,4)}, s4 offen sc1')
    A('s_mov_b64 exec, -1')
    for k in range(8): A(f'v_pk_fma_f32 {v(H+2*k,2)}, {v(X+2*k,2)}, {v(H+2*k,2)}, {s(S_SA,2)}')
    for k in range(4):
        A(f'ds_write2_b32 v{P_XW}, v{V_Q+4*k}, v{V_Q+4*k+2} offset0:0 offset1:1') if False else None
    for k in range(4):
        for ch in range(2):
            A(f'v_cvt_pk_bf16_f32 v{O+2*k+ch}, v{H+4*k+ch}, v{H+4*k+2+ch}')
        for ch in range(2):
            A(f'ds_write_b32 v{P_UW}, v{O+2*k+ch} offset:{L_UT+ch*UTCH+480+256*k}')
    for k in range(4):
        A(f'v_mov_b32 v{V_Q+4*k+1}, v{V_Q+4*k+2}')
        A(f'ds_write_b64 v{P_XW}, {v(V_Q+4*k,2)} offset:{L_XT+512*k}')
    A(f'v_lshlrev_b32 v{V_DKF}, 16, v{V_DK}')
    A(f'v_and_b32 v{V_DKF+1}, 0xffff0000, v{V_DK}')

def j3_issue_ops():
    ops = []
    for e in range(8):
        def f(A, VM, e=e):
            if e == 0:
                A(f's_mul_hi_u32 s5, s{S_J3}, 0x2492493')
                A('s_mul_i32 s6, s5, 112')
                A(f's_sub_u32 s6, s{S_J3}, s6')
                A('s_lshr_b32 s7, s6, 1')
                A('s_and_b32 s6, s6, 1')
                A('s_lshr_b32 s11, s7, 1')
                A('s_lshl_b32 s11, s11, 16')
                A('s_and_b32 s4, s7, 1')
                A('s_lshl_b32 s4, s4, 12')
                A('s_add_u32 s11, s11, s4')
                A('s_lshl_b32 s4, s5, 7')
                A('s_add_u32 s11, s11, s4')
                A('s_lshl_b32 s4, s6, 2')
                A('s_add_u32 s11, s11, s4')
                A('s_lshl_b32 s5, s5, 2')
                A('s_lshl_b32 s6, s6, 1')
                A('s_add_u32 s5, s5, s6')
                A('s_mul_i32 s5, s5, 56')
                A('s_add_u32 s5, s5, s7')
                A('s_lshl_b32 s5, s5, 10')
                A(f's_add_u32 s{S_J3}, s5, {W_W2F:#x}')
                A(f'v_lshrrev_b32 v{V_T+2}, 4, v1')
                A(f'v_lshlrev_b32 v{V_T+2}, 10, v{V_T+2}')
                A(f'v_and_b32 v{V_T+3}, 15, v1')
                A(f'v_lshl_add_u32 v{V_T+2}, v{V_T+3}, 3, v{V_T+2}')
            if e: A('s_add_u32 s11, s11, 0x2000')
            VM.issue(f'buffer_load_dword v{V_J3+e}, v{V_T+2}, {s(SRD_WD,4)}, s11 offen', 'j3')
        ops.append(f)
    return ops

def j3_process(A, VM):
    perm = [0, 1, 2, 3, 4, 5, 6, 7]
    A('s_mov_b32 s6, 0x05040100')
    A('s_mov_b32 s7, 0x07060302')
    for cc in range(2):
        o = V_A + 4*cc
        for j in range(4): A(f'v_perm_b32 v{o+j}, v{V_J3+perm[2*j+1]}, v{V_J3+perm[2*j]}, s{6+cc}')
        VM.issue(f'buffer_store_dwordx4 {v(o,4)}, v{P_L16}, {s(SRD_WS,4)}, s{S_J3} offen sc1', 'j3st')
        if cc == 0: A(f's_add_u32 s{S_J3}, s{S_J3}, {56*1024}')

def conv_main(A, VM, hooks):
    loads = []; seenB = set(); mf = []
    for n in range(32):
        ab = V_A + 4*(n % 8); o = 32*(7 - n % 8)
        loads.append((f'ds_read2_b32 {v(ab,2)}, v{P_AA+n//8} offset0:{o} offset1:{o+1}', ('A', n)))
        loads.append((f'ds_read2_b32 {v(ab+2,2)}, v{P_AA+n//8} offset0:{o+2} offset1:{o+3}', ('A', n)))
        for t in range(n >> 2, 8):
            m = 4*t - n + 3
            if m not in seenB:
                seenB.add(m)
                loads.append((f'ds_read_b128 {a(4*m,4)}, v{P_BA} offset:{128*m}', ('B', m)))
            mf.append((t, n, m))
    last = {}
    for i, (_, k) in enumerate(loads): last[k] = i
    st_ = {'issued': 0, 'done': 0}
    def can_issue(cur_n):
        i = st_['issued']
        if i >= len(loads) or i - st_['done'] >= 15: return False
        k = loads[i][1]
        return not (k[0] == 'A' and k[1] >= cur_n + 8)
    def issue():
        A(loads[st_['issued']][0]); st_['issued'] += 1
    while can_issue(0): issue()
    first = set()
    for idx, (t, n, m) in enumerate(mf):
        needi = max(last[('A', n)], last[('B', m)])
        while st_['issued'] <= needi:
            if st_['issued'] - st_['done'] >= 15:
                A('s_waitcnt lgkmcnt(8)'); st_['done'] = st_['issued'] - 8
            issue()
        if needi >= st_['done']:
            A(f's_waitcnt lgkmcnt({st_["issued"] - needi - 1})'); st_['done'] = needi + 1
        c = v(V_ACC+4*t,4) if t in first else '0'
        first.add(t)
        A(f'v_mfma_f32_16x16x32_bf16 {v(V_ACC+4*t,4)}, {v(V_A+4*(n%8),4)}, {a(4*m,4)}, {c}')
        if idx in hooks: hooks[idx](A, VM)
        else:
            for _ in range(2 if n < 4 else 1):
                if can_issue(n): issue()

def conv_epilogue(A, VM):
    HR = V_Q; XR = V_Q + 8
    for tt in range(2):
        for ch in range(2):
            A(f'ds_read_b64 {v(HR+4*tt+2*ch,2)}, v{P_HA} offset:{L_UT+ch*UTCH+480+512*tt}')
        A(f'ds_read_b128 {v(XR+4*tt,4)}, v{P_XA} offset:{L_XT+1024*tt}')
    A('s_waitcnt lgkmcnt(0)')
    A('s_barrier')
    for t in range(8): A(f'ds_write_b128 v{P_RW}, {v(V_ACC+4*t,4)} offset:{1280*t}')
    HF = V_B; XF = V_B + 16; Y = V_B + 32; P = V_B + 64; U = V_B + 72
    for tt in range(2):
        for ch in range(2):
            for j in range(2):
                A(f'v_lshlrev_b32 v{HF+8*tt+4*ch+2*j}, 16, v{HR+4*tt+2*ch+j}')
                A(f'v_and_b32 v{HF+8*tt+4*ch+2*j+1}, 0xffff0000, v{HR+4*tt+2*ch+j}')
        for i in range(4):
            A(f'v_lshlrev_b32 v{XF+8*tt+i}, 16, v{XR+4*tt+i}')
            A(f'v_and_b32 v{XF+8*tt+4+i}, 0xffff0000, v{XR+4*tt+i}')
    idx = [(tt, ch, j) for tt in range(2) for ch in range(2) for j in range(2)]
    for tt, ch, j in idx:
        h = HF + 8*tt + 4*ch + 2*j
        A(f'v_pk_mul_f32 {v(h,2)}, {v(h,2)}, {v(V_DKF,2)} op_sel:[0,{ch}] op_sel_hi:[1,{ch}]')
    for tt, ch, j in idx:
        h = HF + 8*tt + 4*ch + 2*j; x = XF + 8*tt + 4*ch + 2*j
        A(f'v_pk_fma_f32 {v(x,2)}, {v(h,2)}, {s(S_GA,2)}, {v(x,2)} op_sel:[0,{ch},0] op_sel_hi:[1,{ch},1]')
    A(f's_lshl_b32 s4, s{S_PAIR}, 13')
    A('s_lshl_b32 s5, s3, 11')
    A('s_add_u32 s4, s4, s5')
    A(f's_add_u32 s5, s4, {W_X1S:#x}')
    A(f's_add_u32 s4, s4, {W_X1P:#x}')
    A('s_waitcnt lgkmcnt(0)')
    A('s_barrier')
    for tt in range(2):
        for w in range(4): A(f'ds_read_b128 {v(Y+16*tt+4*w,4)}, v{P_RR} offset:{w*8*1280+1280*tt}')
    for tt in range(2):
        A(f's_waitcnt lgkmcnt({4*(1-tt)})')
        ys = [(Y + 16*tt + 8*ch + 2*j, XF + 8*tt + 4*ch + 2*j, ch) for ch in range(2) for j in range(2)]
        for y, x, ch in ys: A(f'v_pk_add_f32 {v(y,2)}, {v(y,2)}, {v(y+4,2)}')
        for y, x, ch in ys: A(f'v_pk_fma_f32 {v(y,2)}, {v(y,2)}, {s(S_GA,2)}, {v(x,2)} op_sel:[0,{ch},0] op_sel_hi:[1,{ch},1]')
        for i in range(4): A(f'v_cvt_pk_bf16_f32 v{P+4*tt+i}, v{Y+16*tt+i}, v{Y+16*tt+8+i}')
        for i in range(4):
            A(f'v_lshlrev_b32 v{U+2*i}, 16, v{P+4*tt+i}')
            A(f'v_and_b32 v{U+2*i+1}, 0xffff0000, v{P+4*tt+i}')
        for i in range(4): A(f'v_pk_mul_f32 {v(U+2*i,2)}, {v(U+2*i,2)}, {s(S_CB1,2)}')
        for i in range(4): A(f'v_cvt_pk_bf16_f32 v{U+8+4*tt+i}, v{U+2*i}, v{U+2*i+1}')
        VM.issue(f'buffer_store_dwordx4 {v(U+8+4*tt,4)}, v{P_L16}, {s(SRD_WS,4)}, s5 offen offset:{1024*tt} sc1')
        VM.issue(f'buffer_store_dwordx4 {v(P+4*tt,4)}, v{P_L16}, {s(SRD_WS,4)}, s4 offen offset:{1024*tt} sc1', 'x1st')

def flag_store(A, VM, which, tmp):
    A(f'v_mov_b32 v{tmp}, s{S_TAG}')
    A('s_mov_b64 exec, 1')
    VM.issue(f'buffer_store_dword v{tmp}, off, {s(SRD_WS,4)}, s88 offset:{which} sc1')
    A('s_mov_b64 exec, -1')

ACC = 16; WF = 128; XF = 184; TMP = 216
VX = 2; VWA = 6; VWB = 7; VI16 = 8; VHS = 9; VVR = 10; VRF = 11; VST = 224; VFL = 240
VW2 = 12
XRING = 176
def xslot(n): return XRING + 16*(n % 5)
def wslot(m): return 16*m if m <= 10 else 192 + 16*(m - 11)

def g_ids(A):
    A('s_and_b32 s4, s2, 7')
    A('s_lshr_b32 s5, s2, 3')
    A(f's_and_b32 s{S_RB}, s4, 6')
    A('s_lshr_b32 s6, s5, 4')
    A(f's_add_u32 s{S_RB}, s{S_RB}, s6')
    A(f's_and_b32 s{S_CBK}, s4, 1')
    A(f's_lshl_b32 s{S_CBK}, s{S_CBK}, 4')
    A(f's_and_b32 s{S_ROT}, s5, 15')
    A(f's_add_u32 s{S_CBK}, s{S_CBK}, s{S_ROT}')
    A(f's_lshl_b32 s6, s{S_RB}, 10')
    A('s_lshl_b32 s7, s3, 8')
    A(f's_add_u32 s{S_ROW4}, s6, s7')
    A(f's_lshl_b32 s{S_R64}, s4, 2')
    A('s_lshr_b32 s6, s5, 3')
    A(f's_add_u32 s{S_R64}, s{S_R64}, s6')
    A(f's_and_b32 s{S_NB}, s5, 7')
    A(f's_mul_i32 s{S_K0}, s{S_NB}, 7')
    A('s_mul_i32 s6, s3, 14')
    A(f's_add_u32 s{S_K0}, s{S_K0}, s6')
    A('s_lshl_b32 s88, s2, 7')
    A('s_lshl_b32 s5, s3, 2')
    A('s_add_u32 s88, s88, s5')
    A(f's_add_u32 s88, s88, {W_FLAGS:#x}')

def g_tables(A):
    for n in range(16):
        A(f's_add_u32 s4, s{S_ROT}, {n}')
        A('s_and_b32 s4, s4, 15')
        A(f's_lshl_b32 s{T_X+n}, s4, 17')
        A(f's_lshl_b32 s{T_L+n}, s4, 10')
    for n in range(14):
        A(f's_add_u32 s4, s{S_K0}, {n}')
        A('s_sub_u32 s5, s4, 56')
        A('s_cmp_ge_u32 s4, 56')
        A('s_cselect_b32 s4, s5, s4')
        A(f's_lshl_b32 s{T_K(n)}, s4, 10')
def T_K(n): return (56 + n) if n < 8 else (68 + n - 8 if n < 12 else 14 + n - 12)

def cb_load_text(): return [f'buffer_load_dwordx4 {v(V_Q+16,4)}, v{P_T16}, {s(SRD_WS,4)}, s95 offen sc1']

def extra_pass(A):
    T = V_T; F = V_B; K = V_A
    A('s_lshl_b32 s4, s3, 14')
    A(f's_add_u32 s4, s4, {L_G}')
    A(f'v_add_u32 v{T}, s4, v{P_L16}')
    A('s_add_u32 s4, s3, 4')
    A('s_min_u32 s4, s4, 6')
    A('s_lshl_b32 s4, s4, 14')
    A(f's_add_u32 s4, s4, {L_G}')
    A(f'v_add_u32 v{T+1}, s4, v{P_L16}')
    A(f'v_and_b32 v{T+2}, 1, v1')
    A(f'v_lshlrev_b32 v{T+3}, 6, v{T+2}')
    A(f'v_xor_b32 v{T+2}, 1, v{T+2}')
    A(f'v_lshlrev_b32 v{T+2}, 10, v{T+2}')
    A(f'v_and_b32 v{K+8}, 48, v1')
    A(f's_mov_b32 s4, {L_CB}')
    A(f'v_add3_u32 v{T+2}, v{T+2}, v{K+8}, s4')
    A('s_lshl_b32 s4, s3, 7')
    A(f's_add_u32 s4, s4, {L_VV}')
    A(f'v_add3_u32 v{T+3}, v{T+3}, v{K+8}, s4')
    order = []
    for k in range(16):
        b = F + 12*(k % 7)
        order += [(b, T+2, 64*k), (b + 4, T, 1024*k), (b + 8, T+1, 1024*k)]
    for i in range(15): A(f'ds_read_b128 {v(order[i][0],4)}, v{order[i][1]} offset:{order[i][2]}')
    nxt = 15
    for k in range(16):
        b = F + 12*(k % 7)
        A(f's_waitcnt lgkmcnt({nxt - 3*(k+1)})')
        for e in range(2):
            A(f'v_mfma_f32_16x16x32_bf16 {v(K+4*e,4)}, {v(b+4+4*e,4)}, {v(b,4)}, {"0" if k == 0 else v(K+4*e,4)}')
        for _ in range(3):
            if nxt < 48:
                A(f'ds_read_b128 {v(order[nxt][0],4)}, v{order[nxt][1]} offset:{order[nxt][2]}'); nxt += 1
    A(f'ds_write_b128 v{T+3}, {v(K,4)}')
    A(f'ds_write_b128 v{T+3}, {v(K+4,4)} offset:512')

def g1_addr(A):
    T = TMP
    A(f'v_lshlrev_b32 v{TMP+7}, 4, v1')
    A(f'v_add_u32 v{TMP+7}, {L_G}, v{TMP+7}')
    A(f'v_and_b32 v{T}, 15, v1')
    A(f'v_lshrrev_b32 v{T+1}, 4, v1')
    A(f'v_lshlrev_b32 v{VI16}, 4, v{T}')
    A(f'v_lshlrev_b32 v{VX}, 15, v{T+1}')
    A(f's_add_u32 s4, s{S_ROW4}, {W_X1S:#x}')
    A(f'v_add3_u32 v{VX}, v{VX}, v{VI16}, s4')
    for j in range(1, 4): A(f'v_add_u32 v{VX+j}, {8192*j}, v{VX}')
    A(f'v_lshlrev_b32 v{VHS}, 13, v{T+1}')
    A(f'v_add_u32 v{VHS}, v{VHS}, v{VI16}')
    A(f'v_and_b32 v{VVR}, 48, v1')
    A(f'v_add_u32 v{VVR}, {L_VV}, v{VVR}')
    A(f'v_lshlrev_b32 v{T+2}, 13, v0')
    A(f'v_and_b32 v{T+3}, 48, v1')
    A('s_lshl_b32 s4, s3, 6')
    A(f's_add_u32 s4, s4, {L_S3}')
    A(f'v_add_u32 v{T+3}, s4, v{T+3}')
    A(f'v_and_b32 v{T+4}, 7, v1')
    A(f'v_lshlrev_b32 v{T+5}, 2, v{T+4}')
    A(f'v_add_u32 v{T+5}, {L_S3}, v{T+5}')
    A(f'v_lshlrev_b32 v{T+4}, 3, v{T+4}')
    A(f's_lshl_b32 s4, s{S_RB}, 10')
    A(f's_lshl_b32 s5, s{S_CBK}, 5')
    A('s_add_u32 s92, s4, s5')
    A(f's_mul_i32 s4, s{S_NB}, {4*57344}')
    A(f's_add_u32 s4, s4, {W_W2F:#x}')
    A(f'v_lshl_add_u32 v{VW2}, v1, 4, s4')
    for c in range(1, 4): A(f'v_add_u32 v{VW2+c}, {57344*c}, v{VW2}')
    A(f'v_min_u32 v{VRF}, 27, v1')
    A(f'v_lshlrev_b32 v{VRF}, 7, v{VRF}')
    A(f's_mul_i32 s93, s{S_NB}, {28*128}')
    A(f's_add_u32 s93, s93, {W_FLAGS + F_REP:#x}')
    A(f'v_lshlrev_b32 v{TMP+6}, 1, v{VI16}')
    A(f's_lshl_b32 s94, s{S_ROW4}, 1')
    A(f's_add_u32 s94, s94, {W_ST2:#x}')

def x_ops(n):
    return [lambda A, VM, j=j: VM.issue(f'buffer_load_dwordx4 {a(xslot(n)+4*j,4)}, v{VX+j}, {s(SRD_WS,4)}, s{T_X+n} offen sc1', ('x', n)) for j in range(4)]
def w2_ops():
    return [lambda A, VM, c=c, n=n: VM.issue(f'buffer_load_dwordx4 {a(wslot(n)+4*c,4)}, v{VW2+c}, {s(SRD_WS,4)}, s{T_K(n)} offen sc1', ('w', n)) for n in range(14) for c in range(4)]
def w_reads(n):
    b = n & 1
    return [f'ds_read_b128 {v(WF+28*b+4*T,4)}, v{VWA if T < 4 else VWB} offset:{16384*(T&3)}' for T in range(7)]
def x_movs(n):
    b = n & 1
    return [f'v_accvgpr_read_b32 v{XF+16*b+4*t+j}, a{xslot(n)+4*j+t}' for t in range(4) for j in range(4)]

def st2_partial(A):
    D = ACC; S = ACC + 8; Q = ACC + 16
    A('s_mov_b32 s6, 0x3f803f80')
    for k in range(8):
        A(f'v_dot2_f32_bf16 v{S+k}, v{D+k}, s6, 0')
        A(f'v_dot2_f32_bf16 v{Q+k}, v{D+k}, v{D+k}, 0')
    for k in range(8): A(f'v_permlane32_swap_b32 v{S+k}, v{Q+k}')
    for k in range(8): A(f'v_add_f32 v{S+k}, v{S+k}, v{Q+k}')
    for k in range(4): A(f'v_permlane16_swap_b32 v{S+k}, v{S+k+4}')
    for k in range(4): A(f'v_add_f32 v{S+k}, v{S+k}, v{S+k+4}')
    for r in (8, 4, 2, 1):
        for k in range(4): A(f'v_add_f32_dpp v{S+k}, v{S+k}, v{S+k} row_ror:{r} {DPPM}')
    A(f'ds_write_b128 v{TMP+3}, {v(S,4)}')

def st2_final(A, VM):
    D = VST
    for w in range(4): A(f'ds_read2_b32 {v(D+2*w,2)}, v{TMP+5} offset0:{16*w} offset1:{16*w+8}')
    A('s_waitcnt lgkmcnt(0)')
    A(f'v_pk_add_f32 {v(D,2)}, {v(D,2)}, {v(D+2,2)}')
    A(f'v_pk_add_f32 {v(D+4,2)}, {v(D+4,2)}, {v(D+6,2)}')
    A(f'v_pk_add_f32 {v(D,2)}, {v(D,2)}, {v(D+4,2)}')
    finish_stats(A, D, D+1, D+2)
    A(f'v_mov_b32 v{D+3}, s{S_TAG}')
    A('s_lshl_b32 s4, s92, 1')
    A(f's_add_u32 s4, s4, {W_ST2:#x}')
    A('s_mov_b64 exec, 0xff')
    VM.issue(f'buffer_store_dwordx2 {v(D+2,2)}, v{TMP+4}, {s(SRD_WS,4)}, s4 offen sc1')
    A('s_mov_b64 exec, -1')

def gemm1(A, VM):
    A(f's_add_u32 s4, s92, {W_X1P:#x}')
    for f in x_ops(0): f(A, VM)
    VM.issue(f'buffer_load_dwordx4 {v(ACC,4)}, v{TMP+2}, {s(SRD_WS,4)}, s4 offen sc1')
    VM.issue(f'buffer_load_dwordx4 {v(ACC+4,4)}, v{TMP+2}, {s(SRD_WS,4)}, s4 offen offset:16 sc1', 'st')
    for n in range(1, 5):
        for f in x_ops(n): f(A, VM)
    A(f'v_add_u32 v{VWA}, s{T_L}, v{TMP+7}')
    A(f'v_add_u32 v{VWB}, 0x10000, v{VWA}')
    for r in w_reads(0): A(r)
    st(A, 9)
    VM.wait('st')
    st2_partial(A)
    for m in x_movs(0): A(m)
    A('s_waitcnt lgkmcnt(0)')
    A('s_barrier')
    st2_final(A, VM)
    st(A, 10)
    w2 = w2_ops(); w2i = 0
    rep_ld = f'buffer_load_dwordx4 {v(VFL,4)}, v{VRF}, {s(SRD_WS,4)}, s93 offen sc1'
    st2_ld = [f'buffer_load_dwordx4 {v(VST,4)}, v{TMP+6}, {s(SRD_WS,4)}, s94 offen sc1', f'buffer_load_dwordx4 {v(VST+4,4)}, v{TMP+6}, {s(SRD_WS,4)}, s94 offen offset:16 sc1']
    W2START = OPT('W2START', 4)
    for n in range(16):
        b = n & 1
        mf = []
        for T_ in range(7):
            for t in range(4):
                d = v(ACC + 16*T_ + 4*t, 4)
                mf.append(f'v_mfma_f32_16x16x32_bf16 {d}, {v(WF+28*b+4*T_,4)}, {v(XF+16*b+4*t,4)}, {d if n else "0"}')
        slots = [[] for _ in range(28)]
        vm = []
        if n + 5 < 16: vm += x_ops(n + 5)
        if n == W2START - 2: vm.append(lambda A, VM: VM.issue(rep_ld, 'rep'))
        if n == W2START:
            def chk(A, VM):
                VM.wait('rep'); checked(A, 'L_rep', [VFL, VFL+1, VFL+2, VFL+3], TMP, [rep_ld])
            slots[0].append(chk)
        if n >= W2START:
            left = len(w2) - w2i
            cnt = min(left, (7 - len(vm)) if n < 15 else left)
            if n <= 12: cnt = min(cnt, 44 - w2i)
            vm += w2[w2i:w2i+cnt]; w2i += cnt
        if n == 13: vm.append(lambda A, VM: [VM.issue(st2_ld[0]), VM.issue(st2_ld[1], 'st2')])
        if n + 1 < 16:
            slots[0].append(lambda A, VM, n=n: [A(f'v_add_u32 v{VWA}, s{T_L+n+1}, v{TMP+7}'), A(f'v_add_u32 v{VWB}, 0x10000, v{VWA}')])
            for i, r in enumerate(w_reads(n+1)): slots[1 + 2*i].append(lambda A, VM, r=r: A(r))
            mv = x_movs(n+1)
            for k in range(16):
                def f(A, VM, k=k, n=n, mv=mv):
                    if k == 0: VM.wait(('x', n+1))
                    A(mv[k])
                slots[14 + k//2 + 3*(k//8) + (k//2 % 4 >= 2)].append(f)
        free = [2, 6, 10, 16, 20, 23, 27, 4, 8, 12]
        for i, f in enumerate(vm): slots[free[i]].append(f)
        A('s_waitcnt lgkmcnt(0)')
        for i, m in enumerate(mf):
            A(m)
            for f in slots[i]: f(A, VM)
    assert w2i == len(w2), w2i
    st(A, 11)
    V1 = WF
    for T_ in range(7):
        A(f'ds_read_b128 {v(V1+8*T_,4)}, v{VVR} offset:{128*T_}')
        A(f'ds_read_b128 {v(V1+8*T_+4,4)}, v{VVR} offset:{128*T_+64}')
    VM.wait('st2')
    checked(A, 'L_s2', [VST+1, VST+3, VST+5, VST+7], TMP, st2_ld)
    RC = XF
    for t in range(4):
        A(f'v_lshlrev_b32 v{RC+4*t}, 16, v{VST+2*t}')
        A(f'v_and_b32 v{RC+4*t+2}, 0xffff0000, v{VST+2*t}')
    for t in range(4): A(f'v_rcp_f32 v{RC+4*t}, v{RC+4*t}')
    A('s_mov_b32 s4, 0xbfb8aa3b')
    A('s_mov_b32 s5, 0xbfb8aa3b')
    A(f's_mul_i32 s6, s{S_CBK}, {28*8192}')
    A(f's_add_u32 s6, s6, s{S_ROW4}')
    A(f's_add_u32 s6, s6, {W_HHP:#x}')
    for t in range(4):
        A(f'v_mul_f32 v{RC+4*t+1}, 0xbfb8aa3b, v{RC+4*t}')
        A(f'v_mul_f32 v{RC+4*t+2}, -v{RC+4*t+2}, v{RC+4*t}')
    C = XF + 16; H = 232
    for T_ in range(7):
        A(f's_waitcnt lgkmcnt({12 - 2*T_})')
        v1 = V1 + 8*T_; v2 = v1 + 4
        A(f'v_pk_mul_f32 {v(v1,2)}, {v(v1,2)}, s[4:5]')
        A(f'v_pk_mul_f32 {v(v2,2)}, {v(v2,2)}, s[4:5]')
        h = H + 4*(T_ & 1)
        for t in range(4): A(f'v_pk_fma_f32 {v(C+4*t+2,2)}, {v(v1+2,2)}, {v(RC+4*t+2,2)}, {v(v2+2,2)} op_sel:[0,0,0] op_sel_hi:[1,0,1]')
        for t in range(4): A(f'v_pk_fma_f32 {v(C+4*t,2)}, {v(v1,2)}, {v(RC+4*t+2,2)}, {v(v2,2)} op_sel:[0,0,0] op_sel_hi:[1,0,1]')
        for t in range(4): A(f'v_pk_fma_f32 {v(C+4*t,2)}, {v(ACC+16*T_+4*t,2)}, {v(RC+4*t,2)}, {v(C+4*t,2)} op_sel:[0,1,0] op_sel_hi:[1,1,1]')
        for t in range(4): A(f'v_pk_fma_f32 {v(C+4*t+2,2)}, {v(ACC+16*T_+4*t+2,2)}, {v(RC+4*t,2)}, {v(C+4*t+2,2)} op_sel:[0,0,0] op_sel_hi:[1,0,1]')
        for t in range(4):
            A(f'v_exp_f32 v{C+4*t}, v{C+4*t}')
            A(f'v_exp_f32 v{C+4*t+1}, v{C+4*t+1}')
        for t in range(4): A(f'v_pk_add_f32 {v(C+4*t,2)}, {v(C+4*t,2)}, 1.0 op_sel_hi:[1,0]')
        for t in range(4):
            A(f'v_rcp_f32 v{C+4*t}, v{C+4*t}')
            A(f'v_rcp_f32 v{C+4*t+1}, v{C+4*t+1}')
        for t in range(4): A(f'v_pk_mul_f32 {v(C+4*t,2)}, {v(C+4*t,2)}, {v(C+4*t+2,2)}')
        for t in range(4): A(f'v_cvt_pk_bf16_f32 v{h+t}, v{C+4*t}, v{C+4*t+1}')
        VM.issue(f'buffer_store_dwordx4 {v(h,4)}, v{VHS}, {s(SRD_WS,4)}, s6 offen sc1', 'hhst')
        if T_ < 6: A('s_add_u32 s6, s6, 0x8000')

A2 = 16; RAW = 80; FR = 208; X1R = 240; GBR = 176; VH = 2
NRAW = 6
def h_ops(n):
    return [lambda A, VM, j=j: VM.issue(f'buffer_load_dwordx4 {v(RAW+16*(n%NRAW)+4*j,4)}, v{VH+j}, {s(SRD_WS,4)}, s{T_X+n} offen sc1', ('h', n)) for j in range(4)]
def h_movs(n):
    b = n & 1
    return [f'v_mov_b32 v{FR+16*b+4*t+j}, v{RAW+16*(n%NRAW)+4*j+t}' for t in range(4) for j in range(4)]

def g2_pre(A, VM):
    tmp = 6
    for n in range(14): A(f's_lshl_b32 s{T_X+n}, s{T_K(n)}, 7')
    A(f'v_and_b32 v{tmp}, 15, v1')
    A(f'v_lshrrev_b32 v{tmp+1}, 4, v1')
    A(f's_lshl_b32 s4, s{S_R64}, 8')
    A(f's_add_u32 s4, s4, {W_HHP:#x}')
    A(f'v_lshlrev_b32 v{VH}, 15, v{tmp+1}')
    A(f'v_lshl_add_u32 v{VH}, v{tmp}, 4, v{VH}')
    A(f'v_add_u32 v{VH}, s4, v{VH}')
    for j in range(1, 4): A(f'v_add_u32 v{VH+j}, {8192*j}, v{VH}')
    A(f'v_lshlrev_b32 v{tmp+2}, 16, v{tmp+1}')
    A(f'v_lshl_add_u32 v{tmp+2}, v{tmp}, 4, v{tmp+2}')
    A(f's_lshl_b32 s4, s{S_NB}, 18')
    A(f's_lshl_b32 s5, s{S_R64}, 8')
    A('s_add_u32 s4, s4, s5')
    A('s_lshl_b32 s5, s3, 2')
    A('s_add_u32 s4, s4, s5')
    A(f's_add_u32 s4, s4, {W_X1P:#x}')
    for jj in range(8):
        VM.issue(f'buffer_load_dword v{X1R+jj}, v{tmp+2}, {s(SRD_WS,4)}, s4 offen sc1')
        if jj < 7: A('s_add_u32 s4, s4, 0x2000')
    A(f'v_lshlrev_b32 v{tmp+2}, 6, v{tmp+1}')
    A(f's_lshl_b32 s4, s{S_NB}, 8')
    A(f's_add_u32 s4, s4, {W_MOD2 + 4096:#x}')
    for k in range(4): VM.issue(f'buffer_load_dwordx4 {v(GBR+4*k,4)}, v{tmp+2}, {s(SRD_WS,4)}, s4 offen offset:{16*k} sc1', 'epi')
    A(f'v_lshlrev_b32 v10, 12, v{tmp}')
    A(f'v_lshl_add_u32 v10, v{tmp+1}, 5, v10')
    A('s_lshl_b32 s4, s3, 12')
    A(f's_add_u32 s4, s4, {L_G2}')
    A('v_lshl_add_u32 v8, v1, 4, s4')
    A('s_lshl_b32 s4, s3, 14')
    A(f's_add_u32 s4, s4, {L_G2}')
    A('v_lshl_add_u32 v9, v1, 4, s4')

def hh_poll(A):
    A('s_cmp_lg_u32 s3, 0')
    A('s_cbranch_scc1 L_hh_ok')
    A('v_and_b32 v11, 15, v1')
    A('v_lshlrev_b32 v11, 3, v11')
    A('v_bfe_u32 v6, v1, 4, 1')
    A('v_add_u32 v11, v11, v6')
    A('v_lshlrev_b32 v11, 7, v11')
    A(f's_lshr_b32 s4, s{S_R64}, 2')
    A('s_and_b32 s5, s4, 1')
    A('s_lshl_b32 s5, s5, 7')
    A('s_and_b32 s4, s4, 6')
    A('s_add_u32 s4, s4, s5')
    A('s_lshl_b32 s4, s4, 7')
    A(f's_add_u32 s4, s4, {W_FLAGS + F_HH:#x}')
    ld = f'buffer_load_dwordx4 v[16:19], v11, {s(SRD_WS,4)}, s4 offen sc1'
    A(ld)
    A('s_waitcnt vmcnt(0)')
    checked(A, 'L_hh', [16, 17, 18, 19], 6, [ld])

def gemm2(A, VM):
    HPRE = NRAW - 1
    for n in range(HPRE):
        for f in h_ops(n): f(A, VM)
    XF2 = 192; GF = 248 - 8 - 48
    XF2 = 192
    VM.wait('epi')
    GP = 248
    for k in range(8): A(f'v_mov_b32 v{GP+k}, v{GBR+2*k}')
    for k in range(8):
        A(f'v_lshlrev_b32 v{XF2+2*k}, 16, v{X1R+k}')
        A(f'v_and_b32 v{XF2+2*k+1}, 0xffff0000, v{X1R+k}')
    GF = GBR
    for k in range(8):
        A(f'v_lshlrev_b32 v{GF+2*k}, 16, v{GP+k}')
        A(f'v_and_b32 v{GF+2*k+1}, 0xffff0000, v{GP+k}')
    VM.wait(('h', 0))
    for m in h_movs(0): A(m)
    st(A, 13)
    for n in range(14):
        b = n & 1
        mf = []
        for t in range(4):
            for c in range(4):
                d = v(A2 + 16*t + 4*c, 4)
                mf.append(f'v_mfma_f32_16x16x32_bf16 {d}, {a(wslot(n)+4*c,4)}, {v(FR+16*b+4*t,4)}, {d if n else "0"}')
        slots = [None] * 16
        if n + HPRE < 14:
            for i, f in enumerate(h_ops(n + HPRE)): slots[2*i] = f
        if n + 1 < 14:
            mv = h_movs(n+1)
            for k in range(0, 16, 2):
                def f(A, VM, k=k, n=n, mv=mv):
                    if k == 0: VM.wait(('h', n+1))
                    A(mv[k]); A(mv[k+1])
                slots[8 + k//2] = f
        for i, m in enumerate(mf):
            A(m)
            if slots[i]: slots[i](A, VM)
    st(A, 14)
    for t in range(4):
        for c in range(4):
            A(f'ds_write_b128 v8, {v(A2+16*t+4*c,4)} offset:{16384*t+1024*c}')
            if (4*t + c) == 11: A('s_waitcnt lgkmcnt(4)')
    A(f's_lshl_b32 s4, s{S_R64}, 16')
    A('s_lshl_b32 s5, s3, 10')
    A('s_add_u32 s4, s4, s5')
    A(f's_lshl_b32 s5, s{S_NB}, 7')
    A('s_add_u32 s4, s4, s5')
    A('s_waitcnt lgkmcnt(0)')
    A('s_barrier')
    P = RAW
    for w in range(4):
        for c in range(4):
            A(f'ds_read_b128 {v(P+16*w+4*c,4)}, v9 offset:{4096*w+1024*c}')
            if w == 3 and c == 0: A('s_waitcnt lgkmcnt(5)')
    for k in range(8): A(f'v_pk_add_f32 {v(P+2*k,2)}, {v(P+2*k,2)}, {v(P+16+2*k,2)}')
    A('s_waitcnt lgkmcnt(0)')
    for k in range(8): A(f'v_pk_add_f32 {v(P+32+2*k,2)}, {v(P+32+2*k,2)}, {v(P+48+2*k,2)}')
    for k in range(8): A(f'v_pk_add_f32 {v(P+2*k,2)}, {v(P+2*k,2)}, {v(P+32+2*k,2)}')
    for r in range(4):
        for c in range(4):
            dd = 4*r + c
            A(f'v_fma_f32 v{XF2+dd}, v{P+4*c+r}, v{GF+dd}, v{XF2+dd}')
    O = A2
    for k in range(8): A(f'v_cvt_pk_bf16_f32 v{O+k}, v{XF2+2*k}, v{XF2+2*k+1}')
    fl = os.environ.get('OUTFL', '')
    A(f'buffer_store_dwordx4 {v(O,4)}, v10, {s(SRD_OUT,4)}, s4 offen {fl}')
    A(f'buffer_store_dwordx4 {v(O+4,4)}, v10, {s(SRD_OUT,4)}, s4 offen offset:16 {fl}')

def kernel(name):
    global V_DIAG
    import common
    common.WS_DIAG = 0x40000
    A = Asm()
    VM = Tracker(A, 'vmcnt', 63)
    A('s_cmp_ge_u32 s2, 256')
    A('s_cbranch_scc1 L_end')
    kernarg(A)
    if DIAG: A(f'v_mov_b32 v{V_DIAG}, 0')
    st(A, 0)
    A('s_getpc_b64 s[8:9]')
    A('s_lshr_b32 s5, s2, 3')
    A('s_lshl_b32 s4, s5, 10')
    A('v_lshl_add_u32 v4, v0, 2, s4')
    A('v_min_u32 v4, CODE_LAST, v4')
    A('v_mov_b32 v5, 0')
    A('v_lshl_add_u64 v[4:5], v[4:5], 0, s[8:9]')
    A('global_load_dword v59, v[4:5], off')
    A('v_and_b32 v1, 63, v0')
    A('v_lshrrev_b32 v2, 6, v0')
    A('v_readfirstlane_b32 s3, v2')
    A('s_and_b32 s4, s2, 7')
    A(f's_lshl_b32 s{S_PAIR}, s4, 5')
    A(f's_add_u32 s{S_PAIR}, s{S_PAIR}, s5')
    A(f's_mov_b32 s{S_SPIN}, {SPIN}')
    A('s_waitcnt lgkmcnt(0)')
    WOFF = OPT('WOFF', 0) << 20
    if WOFF:
        A(f's_add_u32 s{P_WS}, s{P_WS}, {WOFF:#x}')
        A(f's_addc_u32 s{P_WS+1}, s{P_WS+1}, 0')
    A(f's_load_dword s{S_TAG}, {s(P_WS,2)}, {WS_EPOCH}')
    srd(A, SRD_WMOD, P_WMOD, 512*6144)
    j2_issue(A)
    srd(A, SRD_X, P_X, 2048*1024)
    j1_issue(A, VM)
    params_issue(A, VM)
    srd(A, SRD_WS, P_WS, W_END); srd(A, SRD_OUT, P_OUT, 2048*1024); srd(A, SRD_WD, P_WD, 1792*1024)
    R1POS = OPT('R1POS', 0)
    r1_addr(A)
    if R1POS == 0: r1_issue(A, VM)
    if OPT('TLB', 1): tlb_touch(A, VM)
    st(A, 1)
    precompute(A)
    g_ids(A)
    if R1POS == 1: r1_issue(A, VM)
    A('s_waitcnt lgkmcnt(0)')
    A(f's_add_u32 s{S_TAG}, s{S_TAG}, 1')
    for k in range(8): A(f'v_mov_b32 v{V_Q+2*k+1}, s{S_TAG}')
    st(A, 2)
    VM.wait('j1')
    st(A, 'h')
    j1_part(A, VM)
    j2_part(A)
    A('s_waitcnt lgkmcnt(0)')
    A('s_barrier')
    j12_final(A)
    st(A, 3)
    VM.wait('r1')
    r1_process(A, VM)
    st(A, 'i')
    kgen_valu(A, VM, [])
    VM.wait('r1st')
    flag_store(A, VM, F_RP1, V_T)
    sweep_issue(A, VM)
    st(A, 4)
    A('s_waitcnt lgkmcnt(0)')
    A('s_barrier')
    kgen_mfma(A)
    A('s_waitcnt lgkmcnt(0)')
    A('s_barrier')
    expand(A)
    rp1_load(A, VM)
    st(A, 5)
    VM.wait('sweep')
    checked(A, 'L_sw', [V_Q + 2*k + 1 for k in range(16)] + [V_MG + 1], V_T, sweep_text())
    st(A, 6)
    A('s_mov_b32 s95, 0xffff')
    hbuild(A, VM)
    A('s_or_b32 s4, s2, s3')
    A('s_cmp_lg_u32 s4, 0')
    A('s_cbranch_scc1 L_noep')
    A(f'v_mov_b32 v{V_T}, s{S_TAG}')
    A('s_mov_b64 exec, 1')
    A(f'buffer_store_dword v{V_T}, off, {s(SRD_WS,4)}, 0 offset:{WS_EPOCH} sc1')
    A('s_mov_b64 exec, -1')
    A.label('L_noep')
    VM.wait('rp1')
    checked(A, 'L_rp1', [RP1, RP1+1, RP1+2, RP1+3], V_T, rp1_text())
    st(A, 'b')
    A('s_waitcnt lgkmcnt(0)')
    A('s_barrier')
    hooks = {}
    D0, DS = OPT('DMA0', 8), OPT('DMAS', 4)
    for i, f in enumerate(w1_dma_ops()): hooks[D0 + DS*i] = f
    for i, f in enumerate(j3_issue_ops()): hooks[D0 + DS*28 + 2*i] = f
    conv_main(A, VM, hooks)
    st(A, 7)
    conv_epilogue(A, VM)
    A(f's_mov_b32 s95, {W_MOD2:#x}')
    VM.issue(cb_load_text()[0], 'cb')
    st(A, 'a')
    VM.wait('j3')
    j3_process(A, VM)
    g_tables(A)
    g1_addr(A)
    st(A, 'c')
    VM.wait('x1st')
    flag_store(A, VM, F_X1, V_T+1)
    st(A, 'd')
    VM.wait('cb')
    checked(A, 'L_cb', [V_Q+17, V_Q+19], V_T, cb_load_text())
    A(f'v_lshrrev_b32 v{V_T}, 1, v{P_T16}')
    A(f'v_add_u32 v{V_T}, {L_CB}, v{V_T}')
    A(f'ds_write2_b32 v{V_T}, v{V_Q+16}, v{V_Q+18} offset0:0 offset1:1')
    A('s_waitcnt lgkmcnt(0)')
    st(A, 'f')
    A('s_barrier')
    FD = V_Q
    for k in range(4): A(f's_mov_b32 s{80+k}, {W_FLAGS + 8192*k:#x}')
    fl = [f'buffer_load_dwordx4 {v(FD+4*k,4)}, v{P_FL}, {s(SRD_WS,4)}, s{80+k} offen offset:{F_X1} sc1' for k in range(4)]
    extra_pass(A)
    VM.wait('j3st')
    flag_store(A, VM, F_REP, V_T+1)
    st(A, 8)
    A('s_cmp_lg_u32 s3, 0')
    A('s_cbranch_scc1 L_x1_ok')
    for t in fl: A(t)
    A('s_waitcnt vmcnt(0)')
    checked(A, 'L_x1', list(range(FD, FD+16)), V_T, fl)
    st(A, 'g')
    if DIAG: A(f'v_mov_b32 v255, v{V_DIAG}')
    V_DIAG = 255
    A('s_waitcnt lgkmcnt(0)')
    A('s_barrier')
    gemm1(A, VM)
    VM.wait('hhst')
    flag_store(A, VM, F_HH, 6)
    if DIAG: A(f'v_mov_b32 v15, v{V_DIAG}')
    V_DIAG = 15
    st(A, 12)
    g2_pre(A, VM)
    hh_poll(A)
    A('s_barrier')
    gemm2(A, VM)
    stamp_flush(A, V_DIAG, 0, 2)
    A.label('L_end')
    A('s_endpgm')
    A.label('L_code_end')
    V_DIAG = 49
    body = A.finish().replace('CODE_LAST', f'(L_code_end - {name} - 128)')
    return kernel_head(name) + body, kernel_desc(name, 512, 256)

if __name__ == '__main__':
    hdr = open('cdna_kernels/' + NAME + '.s.ref').read().split('; Override launch')[0]
    n = NAME + '_kernel'
    t, d = kernel(n)
    out = hdr + f'; @launch grid=(256,1,1) block=(256,1,1) lds={L_END}\n.amdgcn_target "amdgcn-amd-amdhsa--gfx950"\n.text\n' + t + '.section .rodata,"a"\n' + d
    dst = sys.argv[1] if len(sys.argv) > 1 else 'cdna_kernels/' + NAME + '.s'
    open(dst, 'w').write(out)
    print('wrote', dst, len(out), 'lds', L_END)
```
